```python
import torch

def _softmax(x, axis=-1):
    return torch.softmax(x, dim=axis)

def _gelu(x):
    return torch.nn.functional.gelu(x, approximate='tanh')

def _silu(x):
    return torch.nn.functional.silu(x)

def _sigmoid(x):
    return torch.sigmoid(x)

def _layernorm(x, axis=-1, eps=1e-05):
    m = x.mean(dim=axis, keepdim=True)
    v = x.var(dim=axis, keepdim=True, unbiased=False)
    return (x - m) / torch.sqrt(v + eps)

def _scatter_add(tgt, idx, src, axis=0):
    return tgt.clone().index_add_(axis, idx, src)

def _segment_sum(src, seg, n):
    out = torch.zeros((n,) + src.shape[1:], dtype=src.dtype)
    return out.index_add_(0, seg, src)

def _pad(x, pw):
    flat = tuple((v for pair in reversed(pw) for v in pair))
    return torch.nn.functional.pad(x, flat)
kernel_name = 'concat_heads__grouped_kv_mqa__memory_aug_recurrent_mem_tr__prompt'

def setup_inputs():

    _w = lambda a: (lambda t: t.to(torch.bfloat16) if t.is_floating_point() else t)(torch.as_tensor(a))

    def _A_setup():
        B, S, D, H = (1, 2048, 640, 32)
        Dh = D // H
        return {'x': _w((lambda *s: torch.randn(*s, dtype=torch.bfloat16) * 0.05)(B, S, D)), 'wq': _w((lambda *s: torch.randn(*s, dtype=torch.bfloat16) * 0.8)(D, H * Dh)), 'wk': _w((lambda *s: torch.randn(*s, dtype=torch.bfloat16) * 0.8)(D, Dh)), 'wv': _w((lambda *s: torch.randn(*s, dtype=torch.bfloat16) * 0.05)(D, Dh)), 'wo': _w((lambda *s: torch.randn(*s, dtype=torch.bfloat16) * 0.05)(H * Dh, D))}
    _A_in = _A_setup()

    def _B_setup():
        B, S, Dm = (1, 2048, 640)
        H, Dh = (32, 128)
        M, seg = (8, 32)
        seg = min(seg, S)
        S = S // seg * seg
        return {'x': _w((lambda *s: torch.randn(*s, dtype=torch.bfloat16) * 0.05)(B, S, Dm)), 'mem0': _w((lambda *s: torch.randn(*s, dtype=torch.bfloat16) * 0.4)(B, M, Dm)), 'Wq': _w((lambda *s: torch.randn(*s, dtype=torch.bfloat16) * 6.4)(Dm, H, Dh) * Dm ** (-0.5)), 'Wk': _w((lambda *s: torch.randn(*s, dtype=torch.bfloat16) * 6.4)(Dm, H, Dh) * Dm ** (-0.5)), 'Wv': _w((lambda *s: torch.randn(*s, dtype=torch.bfloat16) * 0.4)(Dm, H, Dh) * Dm ** (-0.5)), 'Wo': _w((lambda *s: torch.randn(*s, dtype=torch.bfloat16) * 0.4)(H, Dh, Dm) * (H * Dh) ** (-0.5)), 'seg_len': seg}
    _B_in = _B_setup()
    return {'A_x': _A_in['x'], 'A_wq': _A_in['wq'], 'A_wk': _A_in['wk'], 'A_wv': _A_in['wv'], 'A_wo': _A_in['wo'], 'B_x': _B_in['x'], 'B_mem0': _B_in['mem0'], 'B_Wq': _B_in['Wq'], 'B_Wk': _B_in['Wk'], 'B_Wv': _B_in['Wv'], 'B_Wo': _B_in['Wo'], 'B_seg_len': _B_in['seg_len']}

def reference(A_x, A_wq, A_wk, A_wv, A_wo, B_x, B_mem0, B_Wq, B_Wk, B_Wv, B_Wo, B_seg_len):

    def _A_ref(x, wq, wk, wv, wo):
        B, S, D = x.shape
        H = 32
        Dh = D // H
        q = (lambda x, *d: x.permute(*d))((x @ wq).reshape(B, S, H, Dh), 0, 2, 1, 3)
        k = x @ wk
        v = x @ wv
        scores = torch.einsum('bhqd,bkd->bhqk', q, k) * Dh ** (-0.5)
        p = _softmax(scores, axis=-1)
        o = torch.einsum('bhqk,bkd->bhqd', p, v)
        return (lambda x, *d: x.permute(*d))(o, 0, 2, 1, 3).reshape(B, S, H * Dh) @ wo

    def _B_ref(x, mem0, Wq, Wk, Wv, Wo, seg_len):
        B, S, Dm = x.shape
        H, Dh = (Wq.shape[1], Wq.shape[2])
        M = mem0.shape[1]
        scale = Dh ** (-0.5)
        n_seg = S // seg_len
        L = M + seg_len
        idx = torch.arange(L)
        mask = (idx[:, None] < M) | (idx[:, None] >= idx[None, :])
        mem = mem0
        outs = []
        for s in range(n_seg):
            xs = x[:, s * seg_len:(s + 1) * seg_len, :].clone()
            h = torch.concatenate([mem, xs], axis=1)
            q = torch.einsum('btd,dhe->bhte', h, Wq)
            k = torch.einsum('btd,dhe->bhte', h, Wk)
            v = torch.einsum('btd,dhe->bhte', h, Wv)
            scores = torch.einsum('bhqe,bhke->bhqk', q, k) * scale
            scores = torch.where(mask[None, None], scores, -1000000000.0)
            p = _softmax(scores, axis=-1)
            o = torch.einsum('bhqk,bhke->bhqe', p, v)
            o = torch.einsum('bhte,hed->btd', o, Wo)
            mem = o[:, :M, :].clone()
            outs.append(o[:, M:, :])
        return torch.concatenate(outs, axis=1)
    a = _A_ref(A_x, A_wq, A_wk, A_wv, A_wo)
    b = _B_ref(B_x, B_mem0, B_Wq, B_Wk, B_Wv, B_Wo, B_seg_len)
    return torch.concatenate([a, b], axis=-1)
```

```python
class Asm:
    def __init__(self):
        self.lines = []
        self._uid = 0
    def __call__(self, s):
        for ln in s.split('\n'):
            ln = ln.strip()
            if ln:
                if ln.endswith(':') and ' ' not in ln:
                    self.lines.append(ln)
                else:
                    self.lines.append('    ' + ln)
    def label(self, n):
        self.lines.append(n + ':')
    def uid(self, p='L'):
        self._uid += 1
        return f'{p}_{self._uid}'
    def raw(self, s):
        self.lines.append(s)
    def text(self):
        return '\n'.join(self.lines) + '\n'

def v(a, n=1):
    return f'v{a}' if n == 1 else f'v[{a}:{a+n-1}]'
def a(x, n=1):
    return f'a{x}' if n == 1 else f'a[{x}:{x+n-1}]'
def s(x, n=1):
    return f's{x}' if n == 1 else f's[{x}:{x+n-1}]'
def r(x, n=1):
    if x < 256:
        assert x + n <= 256
        return v(x, n)
    return a(x - 256, n)

def header(name):
    return f'''.amdgcn_target "amdgcn-amd-amdhsa--gfx950"
.text
.globl {name}
.p2align 8
.type {name},@function
{name}:
'''
def descriptor(name, vgpr=512, accum=256, sgpr=102, kernarg=120):
    return f'''.section .rodata,"a"
.p2align 6
.amdhsa_kernel {name}
  .amdhsa_next_free_vgpr {vgpr}
  .amdhsa_next_free_sgpr {sgpr}
  .amdhsa_accum_offset {accum}
  .amdhsa_group_segment_fixed_size 0
  .amdhsa_kernarg_size {kernarg}
  .amdhsa_user_sgpr_count 2
  .amdhsa_user_sgpr_kernarg_segment_ptr 1
  .amdhsa_system_sgpr_workgroup_id_x 1
  .amdhsa_float_denorm_mode_32 3
.end_amdhsa_kernel
.text
'''
```

```python
import math
from sched import Stream, finalize, finalize_loop
from chain3 import V, SRD, SP, f2u
from gemm import A, sWS, sDBG, sX, sW0, sW1, sO, sWv, sId, sSpin, sT0, sT1, sT2, vLn
from layout import *

def poll(S, name, dword, cond, fail, vt=250, sleep=4, soff=None):
    S(f'''
    v_mov_b32 {V(vt)}, 0
    {name}:
    buffer_load_dword {V(vt+1)}, {V(vt)}, {SRD(sDBG)}, {('s%d' % soff) if soff is not None else 0} offen offset:{dword*4} sc1
    s_add_u32 s{sSpin}, s{sSpin}, 1
    s_cmp_gt_u32 s{sSpin}, 3000000
    s_cbranch_scc1 {fail}
    s_waitcnt vmcnt(0)
    v_readfirstlane_b32 s{sT0}, {V(vt+1)}
    {cond}
    s_cbranch_scc1 {name}_ok
    s_sleep {sleep}
    s_branch {name}
    {name}_ok:
    ''')

def signal(S, dword, val, vt=250, soff=None, barrier=True, uid=''):
    S('s_waitcnt vmcnt(0)')
    if barrier:
        S(f's_barrier\n s_cmp_lg_u32 s{sWv}, 0\n s_cbranch_scc1 L_sig_{uid}')
    S(f'''
    v_mov_b32 {V(vt)}, 0
    v_mov_b32 {V(vt+1)}, {val}
    s_mov_b64 exec, 1
    buffer_atomic_add {V(vt+1)}, {V(vt)}, {SRD(sDBG)}, {('s%d' % soff) if soff is not None else 0} offen offset:{dword*4}
    s_mov_b64 exec, -1
    ''')
    if barrier: S(f'L_sig_{uid}:')

def t5(sTok, name='L_t5'):
    sK, sCnt = 50, 51
    vL16, vQa = 1, 2
    Q = 8
    NEG = 40
    D = [104, 120, 136]
    Pp = [152, 160]
    KV = [168, 184, 200]
    MX = 216
    T = 220
    S = Stream()
    S(f'''
    v_lshlrev_b32 {V(vL16)}, 4, {V(vLn)}
    v_and_b32 {V(T)}, 31, {V(vLn)}
    v_mul_u32_u24 {V(vQa)}, 40, {V(T)}
    v_lshrrev_b32 {V(T)}, 5, {V(vLn)}
    v_cmp_eq_u32 vcc, 0, {V(T)}
    v_lshl_add_u32 {V(T+1)}, {V(T)}, 4, {V(vQa)}
    s_mul_i32 s{sT0}, s{sTok}, 1280
    s_add_u32 s{sT0}, s{sT0}, {WS_QA}
    s_mov_b32 s{sK}, {WS_KVA}
    ''')
    for t in range(4):
        S(f'buffer_load_dwordx4 {V(Q+8*t,4)}, {V(T+1)}, {SRD(sWS)}, s{sT0} offen offset:{t*1280} sc1')
        S(f'buffer_load_dwordx2 {V(Q+8*t+4,2)}, {V(vQa)}, {SRD(sWS)}, s{sT0} offen offset:{t*1280+32} sc1')
    def ldk(b, n, off): return [f'buffer_load_dwordx4 {V(KV[b]+4*j,4)}, {V(vL16)}, {SRD(sWS)}, s{sK} offen offset:{off+j*1024} sc1' for j in range(n)]
    for o in ldk(0, 2, 0): S(o)
    S(f's_add_u32 s{sK}, s{sK}, 4096')
    for o in ldk(1, 2, 0): S(o)
    S(f's_add_u32 s{sK}, s{sK}, 4096')
    for t in range(4):
        S(f'v_cndmask_b32 {V(Q+8*t+4)}, 0, {V(Q+8*t+4)}, vcc\n v_cndmask_b32 {V(Q+8*t+5)}, 0, {V(Q+8*t+5)}, vcc')
        S(f'v_mov_b32 {V(Q+8*t+6)}, 0\n v_mov_b32 {V(Q+8*t+7)}, 0\n v_mov_b32 {V(MX+t)}, 0xff800000')
    for r in range(16): S(f'v_mov_b32 {V(D[2]+r)}, 0xff800000')
    S(f's_mov_b32 s{sCnt}, 0\n s_waitcnt vmcnt(0)')
    lines = finalize(S)[0]
    L = Stream()
    mf = 'v_mfma_f32_32x32x16_bf16'
    n = 0
    for b in range(3):
        for t in range(4):
            d = D[n % 3]; pd = D[(n - 1) % 3]; pt = (t - 1) % 4; n += 1
            L(f'{mf} {V(d,16)}, {V(KV[b],4)}, {V(Q+8*t,4)}, 0')
            if t == 0:
                L(f's_min_u32 s{sK}, s{sK}, {WS_KVA + 63*4096}')
                for o in ldk((b + 2) % 3, 2, 0): L(o)
                L(f's_add_u32 s{sK}, s{sK}, 4096')
            ops = [f'v_max3_f32 {V(MX+pt)}, {V(MX+pt)}, {V(pd+2*r)}, {V(pd+2*r+1)}' for r in range(8)]
            L(f'{mf} {V(d,16)}, {V(KV[b]+4,4)}, {V(Q+8*t+4,4)}, {V(d,16)}')
            for o in ops: L(o)
    L(f's_add_u32 s{sCnt}, s{sCnt}, 1\n s_cmp_lt_u32 s{sCnt}, 22\n s_cbranch_scc1 {name}_p1')
    lines += ['.p2align 6', f'{name}_p1:'] + finalize_loop(L)
    S = Stream()
    S('s_nop 7\n s_nop 7')
    for r in range(8): S(f'v_max3_f32 {V(MX+3)}, {V(MX+3)}, {V(D[2]+2*r)}, {V(D[2]+2*r+1)}')
    S(f's_mov_b32 s{sK}, {WS_KVA}\n s_waitcnt vmcnt(0)')
    for o in ldk(0, 4, 0): S(o)
    S(f's_add_u32 s{sK}, s{sK}, 4096')
    for o in ldk(1, 4, 0): S(o)
    S(f's_add_u32 s{sK}, s{sK}, 4096')
    for t in range(4):
        S(f'v_mov_b32 {V(T)}, {V(MX+t)}')
        S(f'v_permlane32_swap_b32 {V(T)}, {V(MX+t)}')
        S(f'v_max_f32 {V(T)}, {V(T)}, {V(MX+t)}')
        for r in range(16): S(f'v_sub_f32 {V(NEG+16*t+r)}, 0, {V(T)}')
        for r in range(16): S(f'v_accvgpr_write_b32 {A(16*t+r)}, 0')
    for r in range(4): S(f'v_mov_b32 {V(Pp[1]+4+r)}, 0')
    for r in range(4): S(f'v_mov_b32 {V(KV[2]+12+r)}, 0')
    S(f'{mf} {V(D[0],16)}, {V(KV[0],4)}, {V(Q,4)}, {V(NEG,16)}')
    S(f'{mf} {V(D[0],16)}, {V(KV[0]+4,4)}, {V(Q+4,4)}, {V(D[0],16)}')
    S(f's_mov_b32 s{sCnt}, 0\n s_waitcnt vmcnt(0)\n s_nop 7\n s_nop 7')
    lines += finalize(S)[0]
    def unit(L, n, b, t, first_of_tile, last=False):
        d = D[n % 2]; nd = D[(n + 1) % 2]; p = Pp[n % 2]; pp = Pp[(n + 1) % 2]
        nb, nt = (b, t + 1) if t < 3 else ((b + 1) % 3, 0)
        pb, pt = (b, t - 1) if t > 0 else ((b - 1) % 3, 3)
        ex = lambda r: f'v_exp_f32 {V(d+r)}, {V(d+r)}'
        cv = lambda r: f'v_cvt_pk_bf16_f32 {V(p+r)}, {V(d+2*r)}, {V(d+2*r+1)}'
        L(f'{mf} {A(16*pt,16)}, {V(KV[pb]+12,4)}, {V(pp+4,4)}, {A(16*pt,16)}')
        if first_of_tile:
            L(f's_min_u32 s{sK}, s{sK}, {WS_KVA + 63*4096}')
            for o in ldk((b + 2) % 3, 4, 0): L(o)
            L(f's_add_u32 s{sK}, s{sK}, 4096')
        for r in (0, 1, 2): L(ex(r))
        if not last: L(f'{mf} {V(nd,16)}, {V(KV[nb],4)}, {V(Q+8*nt,4)}, {V(NEG+16*nt,16)}')
        L(ex(3)); L(cv(0)); L(ex(4)); L(cv(1)); L(ex(5))
        if not last: L(f'{mf} {V(nd,16)}, {V(KV[nb]+4,4)}, {V(Q+8*nt+4,4)}, {V(nd,16)}')
        L(ex(6)); L(ex(7)); L(cv(2)); L(ex(8)); L(cv(3)); L(ex(9)); L(ex(10))
        L(f'{mf} {A(16*t,16)}, {V(KV[b]+8,4)}, {V(p,4)}, {A(16*t,16)}')
        L(ex(11)); L(cv(4)); L(ex(12)); L(cv(5)); L(ex(13)); L(ex(14)); L(ex(15)); L(cv(6)); L(cv(7))
    L = Stream(); n = 0
    for b in range(3):
        for t in range(4):
            unit(L, n, b, t, t == 0); n += 1
    L(f's_add_u32 s{sCnt}, s{sCnt}, 1\n s_cmp_lt_u32 s{sCnt}, 21\n s_cbranch_scc1 {name}_p2')
    lines += ['.p2align 6', f'{name}_p2:'] + finalize_loop(L)
    S = Stream()
    S('s_waitcnt vmcnt(0)\n s_nop 7')
    for t in range(4): unit(S, t, 0, t, False, last=(t == 3))
    S(f'{mf} {A(48,16)}, {V(KV[0]+12,4)}, {V(Pp[1]+4,4)}, {A(48,16)}')
    S(f'''
    v_lshrrev_b32 {V(T)}, 5, {V(vLn)}
    v_lshl_add_u32 {V(T+1)}, {V(T)}, 3, {V(vQa)}
    v_mov_b32 {V(T+2)}, 0x7ffffff0
    v_cndmask_b32 {V(T+2)}, {V(T+2)}, {V(vQa)}, vcc
    s_mul_i32 s{sT0}, s{sTok}, 1280
    s_add_u32 s{sT0}, s{sT0}, {WS_OA}
    ''')
    for t in range(4):
        o = D[t % 2]
        for r in range(12): S(f'v_accvgpr_read_b32 {V(o+r)}, {A(16*t+r)}')
        S(f'v_mov_b32 {V(T+3)}, {V(o+8)}\n v_mov_b32 {V(T+4)}, {V(o+8)}')
        S(f'v_permlane32_swap_b32 {V(T+3)}, {V(T+4)}')
        S(f'v_rcp_f32 {V(T+4)}, {V(T+4)}')
        for r in range(12): S(f'v_mul_f32 {V(o+r)}, {V(o+r)}, {V(T+4)}')
        p = Pp[t % 2]
        for r in range(6): S(f'v_cvt_pk_bf16_f32 {V(p+r)}, {V(o+2*r)}, {V(o+2*r+1)}')
        S(f'buffer_store_dwordx2 {V(p,2)}, {V(T+1)}, {SRD(sWS)}, s{sT0} offen offset:{t*1280} sc1')
        S(f'buffer_store_dwordx2 {V(p+2,2)}, {V(T+1)}, {SRD(sWS)}, s{sT0} offen offset:{t*1280+16} sc1')
        S(f'buffer_store_dwordx2 {V(p+4,2)}, {V(T+2)}, {SRD(sWS)}, s{sT0} offen offset:{t*1280+32} sc1')
    lines += finalize(S)[0]
    return lines

def t2(sH, fail, name='L_t2', flags=True):
    sS, sQ, sKV, sKM, sOo, sC, sBig, sSh = 50, 51, 52, 53, 54, 55, 56, 57
    MK = 60
    vL16, vVM = 1, 2
    Qf, Kf, Vf, KM, VM = 8, 40, 72, 104, 120
    SS = 128
    PX, PM = 152, 160
    ONE, SUM = 168, 172
    O = 180
    T = 244
    S = Stream()
    S(f'''
    v_lshlrev_b32 {V(vL16)}, 4, {V(vLn)}
    v_bfe_u32 {V(T)}, {V(vLn)}, 1, 1
    v_xor_b32 {V(T)}, 1, {V(T)}
    v_mul_u32_u24 {V(T)}, 40, {V(T)}
    v_add_u32 {V(vVM)}, {V(vL16)}, {V(T)}
    v_bfe_u32 {V(T)}, {V(vLn)}, 2, 2
    v_lshrrev_b32 {V(T+1)}, 4, {V(vLn)}
    v_sub_u32 {V(T)}, {V(T)}, {V(T+1)}
    v_lshlrev_b32 {V(T)}, 3, {V(T)}
    v_and_b32 {V(T+1)}, 3, {V(vLn)}
    v_add_u32 {V(T)}, {V(T)}, {V(T+1)}
    ''')
    for c in range(-4, 8): S(f'v_cmp_le_i32 s[{MK+2*(c+4)}:{MK+2*(c+4)+1}], {c}, {V(T)}')
    for r in range(4): S(f'v_mov_b32 {V(ONE+r)}, 0x3f803f80')
    for tq in range(2): S(f'v_mov_b32 {V(PM+4*tq+1)}, 0\n v_mov_b32 {V(PM+4*tq+2)}, 0')
    S(f'''
    s_mov_b32 s{sC}, {f2u(128**-0.5 * math.log2(math.e))}
    v_mov_b32 {V(T+3)}, {f2u(-1e9 * 128**0.5)}
    s_mov_b32 s{sS}, s{sWv}
    s_and_b32 s{sSh}, s{sH}, 3
    s_lshl_b32 s{sSh}, s{sSh}, 3
    {name}:
    s_lshl_b32 s{sT1}, s{sS}, 5
    s_add_u32 s{sT1}, s{sT1}, s{sH}
    s_lshl_b32 s{sQ}, s{sT1}, 13
    s_add_u32 s{sQ}, s{sQ}, {WS_QX}
    s_lshl_b32 s{sKV}, s{sT1}, 14
    s_add_u32 s{sKV}, s{sKV}, {WS_KVX}
    s_lshl_b32 s{sKM}, s{sT1}, 12
    s_add_u32 s{sKM}, s{sKM}, {WS_KMVM}
    s_lshl_b32 s{sOo}, s{sS}, 18
    s_lshl_b32 s{sT1}, s{sH}, 12
    s_add_u32 s{sOo}, s{sOo}, s{sT1}
    s_add_u32 s{sOo}, s{sOo}, {WS_O}
    ''')
    if flags:
        S(f's_lshr_b32 s{sT2}, s{sS}, 3\n s_lshl_b32 s{sT2}, s{sT2}, 2')
        poll(S, f'{name}_pk', D_KVQ, f's_cmp_eq_u32 s{sT0}, 0x100020', fail, vt=T, soff=sT2, sleep=16)
    for w in range(4):
        if w == 2: S(f's_add_u32 s{sQ}, s{sQ}, 4096')
        for t in range(2): S(f'buffer_load_dwordx4 {V(Qf+8*w+4*t,4)}, {V(vL16)}, {SRD(sWS)}, s{sQ} offen offset:{(w&1)*2048+t*1024} sc1')
        for t in range(2): S(f'buffer_load_dwordx4 {V(Kf+8*w+4*t,4)}, {V(vL16)}, {SRD(sWS)}, s{sKV} offen offset:{t*1024} sc1')
        for t in range(2): S(f'buffer_load_dwordx4 {V(Vf+8*w+4*t,4)}, {V(vL16)}, {SRD(sWS)}, s{sKV} offen offset:{2048+t*1024} sc1')
        S(f's_add_u32 s{sKV}, s{sKV}, 4096')
    mf = 'v_mfma_f32_16x16x32_bf16'; mh = 'v_mfma_f32_16x16x16_bf16'
    sr = lambda tq, j: SS + 12*tq + 4*j
    for w in range(4):
        for tq in range(2):
            for tk in range(2):
                S(f'{mf} {V(sr(tq,tk),4)}, {V(Kf+8*w+4*tk,4)}, {V(Qf+8*w+4*tq,4)}, {"0" if w == 0 else V(sr(tq,tk),4)}')
    if flags:
        S(f's_and_b32 s{sT2}, s{sH}, 28')
        poll(S, f'{name}_pc', D_PROG, f's_lshr_b32 s{sT0}, s{sT0}, s{sSh}\n s_and_b32 s{sT0}, s{sT0}, 0xff\n s_cmp_gt_u32 s{sT0}, s{sS}', fail, vt=T, soff=sT2, sleep=6)
    for w in range(4): S(f'buffer_load_dwordx4 {V(KM+4*w,4)}, {V(vL16)}, {SRD(sWS)}, s{sKM} offen offset:{w*1024} sc1')
    for w in range(4): S(f'buffer_load_dwordx2 {V(VM+2*w,2)}, {V(vVM)}, {SRD(sWS)}, s{sKM} offen offset:{w*1024} sc1')
    for tq in range(2):
        for tk in range(2):
            for r in range(4):
                c = 4*(tk - tq) + r
                S(f'v_cndmask_b32 {V(sr(tq,tk)+r)}, {V(T+3)}, {V(sr(tq,tk)+r)}, s[{MK+2*(c+4)}:{MK+2*(c+4)+1}]')
    for w in range(4):
        for tq in range(2):
            S(f'{mf} {V(sr(tq,2),4)}, {V(KM+4*w,4)}, {V(Qf+8*w+4*tq,4)}, {"0" if w == 0 else V(sr(tq,2),4)}')
    for tq in range(2):
        x = [sr(tq, 0) + i for i in range(10)]
        m, m2 = T, T + 1
        S(f'v_max3_f32 {V(m)}, {V(x[0])}, {V(x[1])}, {V(x[2])}')
        for i in (3, 5, 7): S(f'v_max3_f32 {V(m)}, {V(m)}, {V(x[i])}, {V(x[i+1])}')
        S(f'v_max_f32 {V(m2)}, {V(m)}, {V(x[9])}\n v_max_f32 {V(m)}, {V(m)}, {V(x[9])}')
        S(f'v_permlane16_swap_b32 {V(m)}, {V(m2)}')
        S(f'v_max_f32 {V(T+2)}, {V(m)}, {V(m2)}\n v_max_f32 {V(m)}, {V(m)}, {V(m2)}')
        S(f'v_permlane32_swap_b32 {V(m)}, {V(T+2)}')
        S(f'v_max_f32 {V(m)}, {V(m)}, {V(T+2)}\n v_mul_f32 {V(m)}, s{sC}, {V(m)}')
        for i in range(10): S(f'v_fma_f32 {V(x[i])}, {V(x[i])}, s{sC}, -{V(m)}')
        for i in range(10): S(f'v_exp_f32 {V(x[i])}, {V(x[i])}')
        for r in range(4): S(f'v_cvt_pk_bf16_f32 {V(PX+4*tq+r)}, {V(x[2*r])}, {V(x[2*r+1])}')
        S(f'v_cvt_pk_bf16_f32 {V(PM+4*tq)}, {V(x[8])}, {V(x[9])}\n v_cvt_pk_bf16_f32 {V(PM+4*tq+3)}, {V(x[8])}, {V(x[9])}')
    for tq in range(2): S(f'{mh} {V(SUM+4*tq,4)}, {V(ONE,2)}, {V(PM+4*tq,2)}, 0')
    orr = lambda tq, w, t: O + 32*tq + 8*w + 4*t
    for tq in range(2):
        for w in range(4):
            for t in range(2): S(f'{mh} {V(orr(tq,w,t),4)}, {V(VM+2*w,2)}, {V(PM+4*tq+2*t,2)}, 0')
    for tq in range(2): S(f'{mf} {V(SUM+4*tq,4)}, {V(ONE,4)}, {V(PX+4*tq,4)}, {V(SUM+4*tq,4)}')
    for tq in range(2):
        for w in range(4):
            for t in range(2): S(f'{mf} {V(orr(tq,w,t),4)}, {V(Vf+8*w+4*t,4)}, {V(PX+4*tq,4)}, {V(orr(tq,w,t),4)}')
    for tq in range(2): S(f'v_rcp_f32 {V(T+tq)}, {V(SUM+4*tq)}')
    for tq in range(2):
        if tq: S(f's_add_u32 s{sOo}, s{sOo}, 131072')
        for w in range(4):
            for i in range(8): S(f'v_mul_f32 {V(orr(tq,w,0)+i)}, {V(orr(tq,w,0)+i)}, {V(T+tq)}')
            d = SS + 4 * ((4*tq + w) % 6)
            for r in range(4): S(f'v_cvt_pk_bf16_f32 {V(d+r)}, {V(orr(tq,w,0)+r)}, {V(orr(tq,w,1)+r)}')
            S(f'buffer_store_dwordx4 {V(d,4)}, {V(vL16)}, {SRD(sWS)}, s{sOo} offen offset:{w*1024} sc1')
    if flags:
        S(f's_and_b32 s{sT2}, s{sS}, 60\n s_and_b32 s{sT1}, s{sS}, 3\n s_lshl_b32 s{sT1}, s{sT1}, 3\n s_lshl_b32 s{sT1}, 1, s{sT1}')
        signal(S, D_T2, f's{sT1}', vt=T, soff=sT2, barrier=False)
    S(f's_waitcnt vmcnt(0)\n s_add_u32 s{sS}, s{sS}, 4\n s_cmp_lt_u32 s{sS}, 64\n s_cbranch_scc1 {name}')
    return finalize(S)[0]

def t3(sG, sCg, fail, name='L_t3', flags=True):
    sU, sB, sSh, sOo = 50, 51, 52, 53
    vL16, vA, vOut = 1, 2, 3
    B = 8
    D = 136
    E = 144
    T = 244
    S = Stream()
    S(f'''
    v_lshlrev_b32 {V(vL16)}, 4, {V(vLn)}
    v_lshrrev_b32 {V(T)}, 2, {V(vLn)}
    v_mul_u32_u24 {V(T)}, 1280, {V(T)}
    v_and_b32 {V(T+1)}, 3, {V(vLn)}
    v_lshl_add_u32 {V(T)}, {V(T+1)}, 4, {V(T)}
    v_lshrrev_b32 {V(T+2)}, 4, {V(vLn)}
    v_bfe_u32 {V(T+3)}, {V(vLn)}, 2, 2
    v_lshl_add_u32 {V(vA)}, {V(T+2)}, 3, {V(T+3)}
    v_lshlrev_b32 {V(vA)}, 6, {V(vA)}
    v_lshl_add_u32 {V(vA)}, {V(T+1)}, 4, {V(vA)}
    s_lshl_b32 s{sSh}, s{sWv}, 15
    v_add_u32 {V(vA)}, s{sSh}, {V(vA)}
    v_lshl_add_u32 {V(vOut)}, {V(T+3)}, 3, {V(T+1)}
    v_mul_u32_u24 {V(vOut)}, 2560, {V(vOut)}
    v_lshl_add_u32 {V(vOut)}, {V(T+2)}, 4, {V(vOut)}
    s_mul_i32 s{sB}, s{sWv}, {1024*1280}
    s_lshl_b32 s{sT1}, s{sCg}, 6
    s_add_u32 s{sB}, s{sB}, s{sT1}
    ''')
    for rnd in range(2):
        for i in range(32):
            S(f's_add_u32 m0, s{sSh}, {i*1024}\n s_add_u32 s{sB}, s{sB}, {0 if (rnd == 0 and i == 0) else 16*1280}')
            S(f'buffer_load_dwordx4 {V(T)}, {SRD(sW0)}, s{sB} offen lds', tag=f'w{rnd}_{i}')
        for ks in range(16):
            S.wait('vm', f'w{rnd}_{2*ks+1}')
            for t in range(2):
                for jj in range(2):
                    S(f'ds_read_b64_tr_b16 {A((16*rnd+ks)*8 + 4*t + 2*jj, 2)}, {V(vA)} offset:{ks*2048 + jj*256 + t*8}')
        S('s_waitcnt lgkmcnt(0)')
    S(f'''
    s_mov_b32 s{sU}, s{sG}
    s_lshl_b32 s{sT1}, s{sWv}, 11
    v_add_u32 {V(vA)}, s{sT1}, {V(vL16)}
    s_barrier
    {name}:
    s_lshl_b32 s{sB}, s{sU}, 17
    s_lshl_b32 s{sT1}, s{sWv}, 15
    s_add_u32 s{sB}, s{sB}, s{sT1}
    s_add_u32 s{sB}, s{sB}, {WS_O}
    ''')
    if flags:
        S(f'''
        s_cmp_lg_u32 s{sWv}, 0
        s_cbranch_scc1 {name}_go
        s_lshr_b32 s{sT1}, s{sU}, 1
        s_and_b32 s{sT2}, s{sT1}, 60
        s_and_b32 s{sSh}, s{sT1}, 3
        s_lshl_b32 s{sSh}, s{sSh}, 3
        ''')
        poll(S, f'{name}_p', D_T2, f's_lshr_b32 s{sT0}, s{sT0}, s{sSh}\n s_and_b32 s{sT0}, s{sT0}, 0xff\n s_cmp_eq_u32 s{sT0}, 32', fail, vt=T, soff=sT2, sleep=6)
        S(f'{name}_go:')
    S('s_barrier')
    for ks in range(32):
        if ks and ks % 4 == 0: S(f's_add_u32 s{sB}, s{sB}, 4096')
        S(f'buffer_load_dwordx4 {V(B+4*ks,4)}, {V(vL16)}, {SRD(sWS)}, s{sB} offen offset:{(ks%4)*1024} sc1')
    mf = 'v_mfma_f32_16x16x32_bf16'
    for ks in range(32):
        for t in range(2):
            S(f'{mf} {V(D+4*t,4)}, {A(ks*8+4*t,4)}, {V(B+4*ks,4)}, {"0" if ks == 0 else V(D+4*t,4)}')
    S(f'ds_write_b128 {V(vA)}, {V(D,4)}\n ds_write_b128 {V(vA)}, {V(D+4,4)} offset:1024')
    S(f'''
    s_waitcnt lgkmcnt(0)
    s_barrier
    s_cmp_lg_u32 s{sWv}, 0
    s_cbranch_scc1 {name}_next
    ''')
    for j in range(6): S(f'ds_read_b128 {V(E+4*j,4)}, {V(vL16)} offset:{2048 + j*1024}')
    S(f'''
    s_lshr_b32 s{sT1}, s{sU}, 1
    s_lshl_b32 s{sT1}, s{sT1}, 5
    s_and_b32 s{sT2}, s{sU}, 1
    s_lshl_b32 s{sT2}, s{sT2}, 2
    s_add_u32 s{sT1}, s{sT1}, s{sT2}
    s_mul_i32 s{sOo}, s{sT1}, 2560
    s_lshl_b32 s{sT1}, s{sCg}, 6
    s_add_u32 s{sOo}, s{sOo}, s{sT1}
    ''')
    for j in range(3):
        for i in range(8): S(f'v_add_f32 {V(D+i)}, {V(D+i)}, {V(E+8*j+i)}')
    for r in range(4): S(f'v_cvt_pk_bf16_f32 {V(E+r)}, {V(D+2*r)}, {V(D+2*r+1)}')
    S(f'buffer_store_dwordx4 {V(E,4)}, {V(vOut)}, {SRD(sO)}, s{sOo} offen offset:1280')
    S(f'''
    s_waitcnt lgkmcnt(0)
    {name}_next:
    s_add_u32 s{sU}, s{sU}, 8
    s_cmp_lt_u32 s{sU}, 128
    s_cbranch_scc1 {name}
    s_waitcnt vmcnt(0)
    ''')
    return finalize(S)[0]
```

```python
import struct, math
from sched import Stream, finalize, finalize_loop, State, I

def f2u(x): return struct.unpack('<I', struct.pack('<f', x))[0]
def V(a, n=1): return f'v{a}' if n == 1 else f'v[{a}:{a+n-1}]'
def Rg(x, n=1):
    if x < 256:
        assert x + n <= 256
        return V(x, n)
    x -= 256
    return f'a{x}' if n == 1 else f'a[{x}:{x+n-1}]'

WS_MB1   = 0
WS_MB2L  = 0x50000
WS_MB2R  = 0x200000
WS_KMVM  = 0x400000
WS_KVX   = 0xC00000
WS_CHAIN_END = WS_KVX + 65*32*16384
L_MEM = 0; L_EX = 10240; L_MISC = 15360; L_W = 16384
PARTS = ([0, 1, 2], [3, 4])
vL16, vIDX, vZ, vCS, vWL, vH1S, vSL, vL4 = range(8)
T0, T1, T2, T3 = 8, 9, 10, 11
AB = [12, 16, 20, 24]
accQ, accK, accV, GB, GC = 28, 32, 36, 40, 44
P = [48, 56]
KX, VX = 64, 72
W0 = 80
sWS, sDBG, sW = 4, 8, 12
sH, sWv, sStep, sSpin, sC, sH1, sGA, sGB, sGC = range(16, 25)
sSLl, sSLr, sKV2 = 25, 26, 27
sKV, sKM, sT0, sT1, sForce = 30, 31, 33, 34, 35
mA, mSq, mSk, mR = 36, 38, 40, 42
sStamp = 52
SRD = lambda b: f's[{b}:{b+3}]'
SP = lambda b: f's[{b}:{b+1}]'

class Plan:
    def __init__(self, c, cfg=None):
        cfg = cfg or {}
        self.c = c
        own = PARTS[c]; rem = PARTS[1 - c]
        self.own, self.rem = own, rem
        self.korder = [4*a + j for a in own + rem for j in range(4)]
        nh = cfg.get('vhold', 2)
        seq = []
        for n, k in enumerate(self.korder):
            seq += [('Q', k), ('K', k)]
            if n < 20 - nh: seq.append(('V', k))
        seq += [('V', k) for k in self.korder[20 - nh:]]
        self.seq = seq
        self.oo = [('O', a, w2) for a in own for w2 in range(4)]
        if c == 0:
            self.qslots = cfg.get('qslots0', {0: [0, 8, 16, 24, 32, 40, 48, 55], 1: [1, 12, 20, 28, 36, 44, 52]})
            self.oslots = cfg.get('oslots0', {'P0': [0], 'P1': [1], 'VX': [6]})
        else:
            self.qslots = cfg.get('qslots1', {0: [0, 10, 20, 30, 40, 50], 1: [1, 15, 25, 35, 45]})
            self.oslots = cfg.get('oslots1', {'P0': [0], 'P1': [1], 'VX': [6]})
        self.l2 = []; self.lds = []
        for sl, L in self.qslots.items(): self.lds += [seq[x] for x in L]
        for sl, L in self.oslots.items(): self.lds += [self.oo[x] for x in L]
        assert len(self.lds) == len(seq) + len(self.oo) - 54, len(self.lds)
        self.reg = {}
        r = W0
        for f in seq + self.oo:
            if f in self.lds: continue
            self.reg[f] = r; r += 8
        assert r == 512, r

def ld_lds(plan, f, slot):
    i = plan.lds.index(f)
    return [f'ds_read_b128 {V(slot+4*hh,4)}, {V(vWL)} offset:{i*2048+hh*1024}' for hh in range(2)]
def ld_frag(plan, f, slot):
    return ld_lds(plan, f, slot)
def ld_kv(which, slot):
    return [f'buffer_load_dwordx4 {V(slot+4*hh,4)}, {V(vL16)}, {SRD(sWS)}, s{sKV2 if which else sKV} offen offset:{which*2048+hh*1024} sc1' for hh in range(2)]
def smf(acc, a, b):
    return f'v_smfmac_f32_16x16x64_bf16 {V(acc,4)}, {V(a,4)}, {Rg(b,8)}, {V(vIDX)}'
def rdA(dst, k):
    return f'ds_read_b128 {V(dst,4)}, {V(vCS)} offset:{L_MEM + (k>>1)*1024 + (k&1)*32}'
def zero4(r):
    return [f'v_mov_b64 {V(r,2)}, 0', f'v_mov_b64 {V(r+2,2)}, 0']
def tagop(r, T):
    return f'v_or_b32 {V(r)}, 1, {V(r)}' if T else f'v_and_b32 {V(r)}, -2, {V(r)}'
def red3(d, a, b, c, T):
    return f'v_bitop3_b32 {V(d)}, {V(a)}, {V(b)}, {V(c)} bitop3:0x80' if T else f'v_or3_b32 {V(d)}, {V(a)}, {V(b)}, {V(c)}'
def red2(d, a, b, T):
    return f'v_and_b32 {V(d)}, {V(a)}, {V(b)}' if T else f'v_or_b32 {V(d)}, {V(a)}, {V(b)}'
def check_ops(regs, T, t, force=False):
    regs = list(regs); o = [red3(t, regs[0], regs[1], regs[2], T)]; regs = regs[3:]
    while len(regs) >= 2:
        o.append(red3(t, t, regs[0], regs[1], T)); regs = regs[2:]
    if regs and T and not force:
        o.append(f'v_bitop3_b32 {V(t)}, {V(t)}, {V(regs[0])}, 1 bitop3:0x80')
    else:
        if regs: o.append(red2(t, t, regs[0], T))
        o.append(f'v_and_or_b32 {V(t)}, {V(t)}, 1, s{sForce}' if force else f'v_and_b32 {V(t)}, 1, {V(t)}')
    o.append(f'v_cmp_ne_u32 vcc, {T}, {V(t)}')
    return o
def pause(S, cyc):
    n = cyc // 4
    while n > 0:
        m = min(n, 16); S(f's_nop {m-1}'); n -= m
def stamp(S, cfg, nm):
    L = cfg.get('stamps') or []
    if nm in L:
        i = L.index(nm); S(f'{"s_memrealtime" if cfg.get("rt") else "s_memtime"} s[{sStamp+2*i}:{sStamp+2*i+1}]')

def step(S, R, plan, w, T, cfg, uid):
    st = cfg.get('st', '')
    c = plan.c
    Tin = 1 - T
    loc = dict(plan.reg)
    first = False
    fail = cfg.get('fail', 'L_chain_fail')
    cf = lambda k, d: cfg.get(f'{k}{c}', cfg.get(k, d))
    def retry(name, cnt, loads, regs, TT, t, redo):
        X = Stream()
        X(f'{name}_r:')
        X(f's_add_u32 s{sSpin}, s{sSpin}, 1')
        if cfg.get('count'): X(f's_add_u32 s{87+cnt}, s{87+cnt}, 1')
        X(f's_cmp_gt_u32 s{sSpin}, {cfg.get("spin", 4000000)}\n s_cbranch_scc1 {fail}')
        for o in loads: X(o)
        X('s_waitcnt vmcnt(0)')
        for o in check_ops(regs, TT, t): X(o)
        X(f's_cbranch_vccnz {name}_r')
        for o in redo: X(o)
        X(f's_nop 7\n s_waitcnt lgkmcnt(0)\n s_branch {name}')
        R.extend(finalize(X)[0])
    slotreg = {0: P[0], 1: P[1], 'P0': P[0], 'P1': P[1], 'VX': VX}
    base1 = plan.own[0] * 2048; base2 = plan.rem[0] * 2048
    L_O = L_MEM + (8192 if c == 0 else 0)
    nown = 4 * len(plan.own)
    def gather(reg, sreg, off):
        return (f'buffer_load_dwordx4 {V(reg,4)}, {V(vL16)}, {SRD(sWS)}, s{sreg} offen sc1',
                f'ds_write_b128 {V(vL16)}, {V(reg,4)} offset:{L_MEM + off}', list(range(reg, reg + 4)))
    GA = AB[3]
    g1 = [gather(GA, sGA, base1 + w*1024)]; g2 = [gather(GB, sGB, base2 + w*1024)]
    if w < 2:
        if c == 0: g1.append(gather(GC, sGC, base1 + 4096 + w*1024))
        else: g2.append(gather(GC, sGC, base2 + 4096 + w*1024))
    stamp(S, cfg, 'start')
    seq = plan.seq; ko = plan.korder
    kpos = {k: n for n, k in enumerate(ko)}
    nxt = {}
    for sl, L in plan.qslots.items():
        for a, b in zip(L, L[1:] + [None]):
            loc[seq[a]] = slotreg[sl]
            nxt[a] = (seq[b] if b is not None else plan.oo[plan.oslots[f'P{sl}'][0]], slotreg[sl])
    onxt = {}
    for sl, L in plan.oslots.items():
        for a, b in zip(L, L[1:] + [None]):
            loc[plan.oo[a]] = slotreg[sl]
            if b is not None: onxt[a] = (plan.oo[b], slotreg[sl])
    PF = cf('apf', 2)
    for n in range(PF): S(rdA(AB[n], ko[n]))
    gr = [x for g in g2 for x in g[2]]
    bar_at = cf('bar2_at', 3 * nown - 5); chk_at = cf('chk2_at', bar_at - 9)
    vq = []; lq = []; mq = []
    lastuse = {}; firstuse = {}
    for i, f in enumerate(seq):
        lastuse[kpos[f[1]]] = i; firstuse.setdefault(kpos[f[1]], i)
    nextA = PF
    acc = {'Q': accQ, 'K': accK, 'V': accV}
    SEL = GB
    for i, f in enumerate(seq):
        if i == chk_at:
            vq += check_ops(gr, Tin, T0, force=(Tin == 1)) + ['s_nop 0', 'BR2']
            lq = [(g[1], 'gw') for g in g2] + lq
        if i == bar_at:
            assert 'BR2' not in vq and not any(t == 'gw' for _, t in lq)
            S.wait('lg', 'gw'); S('s_barrier'); stamp(S, cfg, 'bar2')
            vq += [f'v_cndmask_b32 {V(SEL)}, 0, {V(vZ)}, {SP(mSq)}', f'v_cndmask_b32 {V(SEL+1)}, 0, {V(vZ)}, {SP(mSk)}']
            S(f's_mov_b64 vcc, {SP(mA)}')
            if Tin == 1: S(f's_mov_b32 s{sForce}, 0')
        if i == len(seq) - cfg.get('vhold', 2): stamp(S, cfg, 'qkend')
        if i == chk_at: stamp(S, cfg, 'chk2')
        S(smf(acc[f[0]], AB[kpos[f[1]] % 4], loc[f]))
        stamp(S, cfg, f'q{i}')
        if i in nxt:
            nf, sl = nxt[i]; lq += [(o, None) for o in ld_lds(plan, nf, sl)]
        canA = nextA < 20 and (nextA < nown or i >= bar_at) and (nextA < 4 or lastuse[nextA - 4] <= i) and firstuse[nextA] - i <= 3 * PF + 1
        if canA:
            S(rdA(AB[nextA % 4], ko[nextA])); nextA += 1
        elif lq:
            o, t = lq.pop(0); S(o, tag=t)
        if cf('early2', None) is None and i == cf('g2_at', -1):
            if Tin == 1: S(f's_cmp_lg_u32 s{sForce}, 0\n s_cbranch_scc1 L_g2s_{uid}')
            for g in g2: S(g[0])
            if Tin == 1: S(f'L_g2s_{uid}:')
        if mq and (i & 1): S(mq.pop(0))
        if vq:
            o = vq.pop(0)
            if o == 'BR2':
                nm = f'L_c2_{uid}'
                while any(t == 'gw' for _, t in lq):
                    o2, t2 = lq.pop(0); S(o2, tag=t2)
                S(f's_cbranch_vccnz {nm}_r'); S(f'{nm}:')
                retry(nm, 2, [g[0] for g in g2], gr, Tin, T0, [g[1] for g in g2])
                mq += ld_kv(1, VX)
            else: S(o)
    assert not vq and not mq
    for o, t in lq: S(o, tag=t)
    PK = GC; X = GC; D1, D2 = accQ, accK; S1, S2, S0 = accQ, accK, AB[0]
    S(f'v_cvt_pk_bf16_f32 {V(PK)}, {V(accQ)}, {V(accQ+1)}')
    S(f'v_cvt_pk_bf16_f32 {V(PK+1)}, {V(accK)}, {V(accK+1)}')
    S(f'v_cvt_pk_bf16_f32 {V(PK+2)}, {V(accQ+2)}, {V(accQ+3)}')
    S(f'v_cvt_pk_bf16_f32 {V(PK+3)}, {V(accK+2)}, {V(accK+3)}')
    S(f'v_mfma_f32_16x16x16_bf16 {V(D1,4)}, {V(PK,2)}, {V(SEL,2)}, 0')
    S(f'v_mfma_f32_16x16x16_bf16 {V(D2,4)}, {V(PK+2,2)}, {V(SEL,2)}, 0')
    stamp(S, cfg, 'tr')
    VM = GB + 2
    S(f'v_cvt_pk_bf16_f32 {V(VM)}, {V(accV)}, {V(accV+1)}')
    S(f'v_cvt_pk_bf16_f32 {V(VM+1)}, {V(accV+2)}, {V(accV+3)}')
    ONE = accV
    for r in range(4): S(f'v_mov_b32 {V(ONE+r)}, 0x3f803f80')
    for r in range(4): S(f'v_cvt_pk_bf16_f32 {V(X+r)}, {V(D1+r)}, {V(D2+r)}')
    S(f'v_mfma_f32_16x16x32_bf16 {V(S2,4)}, {V(KX+4,4)}, {V(X,4)}, 0')
    S(f'v_mfma_f32_16x16x32_bf16 {V(S1,4)}, {V(KX,4)}, {V(X,4)}, 0')
    S(f'v_mfma_f32_16x16x32_bf16 {V(S0,4)}, {V(X,4)}, {V(X,4)}, 0')
    stamp(S, cfg, 'sc')
    db = 'quad_perm:[0,1,0,1] row_mask:0xf bank_mask:0xf'
    dq = 'quad_perm:[2,3,2,3] row_mask:0xf bank_mask:0xf'
    km = c == 1 and not cfg.get('nokm')
    if km:
        S(f'v_mov_b32_dpp {V(T1)}, {V(VM)} {db}')
        S(f'v_mov_b32_dpp {V(T2)}, {V(VM+1)} {db}')
    for r in range(4): S(f'v_cndmask_b32_dpp {V(S1+r)}, {V(S2+r)}, {V(S1+r)}, vcc {dq}')
    S(f'ds_write_b128 {V(vL16)}, {V(S1,4)} offset:{L_EX + w*1024}', tag='xw')
    S(f'v_cndmask_b32_dpp {V(T3)}, {V(S0+1)}, {V(S0)}, vcc {dq}')
    S(f'ds_write_b32 {V(vL16)}, {V(T3)} offset:{L_EX + 4096 + 4*w}', tag='xw')
    stamp(S, cfg, 'xw')
    if km:
        S(f'v_cndmask_b32 {V(X)}, {V(X)}, {V(VM)}, vcc')
        S(f'v_cndmask_b32 {V(X+1)}, {V(X+1)}, {V(VM+1)}, vcc')
        S(f'v_cndmask_b32 {V(X+2)}, {V(X+2)}, {V(T1)}, vcc')
        S(f'v_cndmask_b32 {V(X+3)}, {V(X+3)}, {V(T2)}, vcc')
        S(f'buffer_store_dwordx4 {V(X,4)}, {V(vL16)}, {SRD(sWS)}, s{sKM} offen sc1', tag='km')
        S(f's_add_u32 s{sKM}, s{sKM}, {32*4096}')
    S(f's_add_u32 s{sStep}, s{sStep}, 1')
    if T == 1:
        S(f's_cmp_ge_u32 s{sStep}, {cfg.get("steps", 64)}')
        S(f's_cbranch_scc1 {cfg.get("done", "L_chain_done")}')
    if not cfg.get('samekv'):
        S(f's_add_u32 s{sKV}, s{sKV}, {32*16384}')
        S(f's_add_u32 s{sKV2}, s{sKV2}, {32*16384}')
    for o in ld_kv(0, KX): S(o)
    fl = cfg.get('flags')
    flagld = None
    if fl and w == 3:
        flagld = f'buffer_load_dword {V(vSL)}, off, {SRD(sDBG)}, s{sT1} offset:{fl["kvq"]*4} sc1'
        S(f's_add_u32 s{sT1}, s{sStep}, 1\n s_min_u32 s{sT1}, s{sT1}, 63\n s_lshr_b32 s{sT1}, s{sT1}, 3\n s_lshl_b32 s{sT1}, s{sT1}, 2')
        S(flagld)
    S.wait('lg', 'xw'); S('s_barrier')
    stamp(S, cfg, 'barb')
    E = [accQ, accK, AB[1], AB[2]]; E4 = AB[3]
    for j in range(4): S(f'ds_read_b128 {V(E[j],4)}, {V(vL16)} offset:{L_EX + j*1024}')
    S(f'ds_read_b128 {V(E4,4)}, {V(vL16)} offset:{L_EX + 4096}')
    for r in range(4): S(f'v_add_f32 {V(E[0]+r)}, {V(E[0]+r)}, {V(E[1]+r)}')
    for r in range(4): S(f'v_add_f32 {V(E[0]+r)}, {V(E[0]+r)}, {V(E[2]+r)}')
    for r in range(4): S(f'v_add_f32 {V(E[0]+r)}, {V(E[0]+r)}, {V(E[3]+r)}')
    S(f'v_add_f32 {V(E4)}, {V(E4)}, {V(E4+1)}')
    S(f'v_add_f32 {V(E4+2)}, {V(E4+2)}, {V(E4+3)}')
    x = [E[0], E[0]+1, E[0]+2, E[0]+3, E4]
    PX = accK; PM = E4
    S(f'v_max3_f32 {V(T0)}, {V(x[0])}, {V(x[1])}, {V(x[2])}')
    S(f'v_add_f32 {V(E4)}, {V(E4)}, {V(E4+2)}')
    stamp(S, cfg, 'sum')
    S(f'v_max3_f32 {V(T0)}, {V(T0)}, {V(x[3])}, {V(x[4])}')
    S(f'v_mov_b32 {V(PM+1)}, 0')
    S(f'v_mov_b32 {V(PM+2)}, 0')
    dx = 'quad_perm:[2,3,0,1] row_mask:0xf bank_mask:0xf'
    S(f'v_max_f32_dpp {V(T1)}, {V(T0)}, {V(T0)} {dx}')
    S(f'v_max_f32_dpp {V(T2)}, {V(T0)}, {V(T0)} {dx}')
    S(f'v_permlane16_swap_b32 {V(T1)}, {V(T2)}')
    S(f'v_max_f32 {V(T0)}, {V(T1)}, {V(T2)}')
    S(f'v_max_f32 {V(T3)}, {V(T1)}, {V(T2)}')
    S(f'v_permlane32_swap_b32 {V(T0)}, {V(T3)}')
    S(f'v_max_f32 {V(T0)}, {V(T0)}, {V(T3)}')
    S(f'v_mul_f32 {V(T0)}, s{sC}, {V(T0)}')
    for j in (4, 0, 1, 2, 3): S(f'v_fma_f32 {V(x[j])}, {V(x[j])}, s{sC}, -{V(T0)}')
    stamp(S, cfg, 'fma')
    for j in (4, 0, 1): S(f'v_exp_f32 {V(x[j])}, {V(x[j])}')
    S(f'v_mov_b32_dpp {V(T1)}, {V(x[4])} {db}')
    S(f'v_cvt_pk_bf16_f32 {V(PX)}, {V(x[0])}, {V(x[1])}')
    for j in (2, 3): S(f'v_exp_f32 {V(x[j])}, {V(x[j])}')
    S(f'v_cvt_pk_bf16_f32 {V(PM+3)}, {V(x[4])}, {V(T1)}')
    S(f'v_cvt_pk_bf16_f32 {V(PX+1)}, {V(x[2])}, {V(x[3])}')
    S(f'v_cvt_pk_bf16_f32 {V(PM)}, {V(x[4])}, {V(T1)}')
    S(f'v_mov_b32_dpp {V(PX+2)}, {V(PX)} {db}')
    S(f'v_mov_b32_dpp {V(PX+3)}, {V(PX+1)} {db}')
    SUM = accQ; O0, O1 = AB[0], AB[1]
    stamp(S, cfg, 'pv')
    S(f'v_mfma_f32_16x16x16_bf16 {V(SUM,4)}, {V(ONE,2)}, {V(PM,2)}, 0')
    S(f'v_mfma_f32_16x16x16_bf16 {V(O0,4)}, {V(VM,2)}, {V(PM,2)}, 0')
    S(f'v_mfma_f32_16x16x32_bf16 {V(SUM,4)}, {V(ONE,4)}, {V(PX,4)}, {V(SUM,4)}')
    S(f'v_mfma_f32_16x16x16_bf16 {V(O1,4)}, {V(VM,2)}, {V(PM+2,2)}, 0')
    S(f'v_mfma_f32_16x16x32_bf16 {V(O0,4)}, {V(VX,4)}, {V(PX,4)}, {V(O0,4)}')
    S(f'v_mfma_f32_16x16x32_bf16 {V(O1,4)}, {V(VX+4,4)}, {V(PX,4)}, {V(O1,4)}')
    S(f'v_rcp_f32 {V(T0)}, {V(SUM)}')
    WA = AB; WC = [accV, GB, GC]
    for o in zero4(WC[0]): S(o)
    for r in range(4): S(f'v_mul_f32 {V(O0+r)}, {V(O0+r)}, {V(T0)}')
    for r in range(4): S(f'v_mul_f32 {V(O1+r)}, {V(O1+r)}, {V(T0)}')
    OP = accK
    for r in range(4): S(f'v_cvt_pk_bf16_f32 {V(OP+r)}, {V(O0+r)}, {V(O1+r)}')
    stamp(S, cfg, 'ocvt')
    S(f's_mov_b64 exec, {SP(mA)}')
    S(f'ds_write_b128 {V(vCS)}, {V(OP,4)} offset:{L_O + (w>>1)*1024 + (w&1)*32}', tag='ow')
    S('s_mov_b64 exec, -1')
    for o in ld_frag(plan, plan.oo[plan.oslots['VX'][0]], VX): S(o)
    na = len(plan.own)
    for a in range(1, na):
        for o in zero4(WC[a]): S(o)
    red = w < na
    RS = accQ
    if red:
        for r in range(4): S(f'v_cndmask_b32 {V(RS+r)}, 0, {V(vZ)}, {SP(mR)}')
    S.wait('lg', 'ow'); S('s_barrier')
    stamp(S, cfg, 'barc')
    if cfg.get('fresh', True):
        S(f's_add_u32 s{sSLr}, s{sSLr}, 32768\n s_add_u32 s{sGB}, s{sGB}, 32768')
        if c == 1: S(f's_add_u32 s{sGC}, s{sGC}, 32768')
    for j in range(4): S(f'ds_read_b128 {V(WA[j],4)}, {V(vCS)} offset:{L_O + (j>>1)*1024 + (j&1)*32}')
    oo = plan.oo
    lq = []; vq = []
    def pack(n):
        o = []; a = plan.own[n]
        for hf in range(2):
            d = WC[n] + hf
            o += [(f'v_cvt_pk_bf16_f32 {V(d)}, {V(WC[n]+2*hf)}, {V(WC[n]+2*hf+1)}', None),
                  (tagop(d, T) + f'\n s_mov_b32 s{sT0}, {a*65536 + hf*8192}\n buffer_store_dword {V(d)}, {V(vH1S)}, {SRD(sWS)}, s{sT0} offen {st}', f'h1s{n}')]
        return o
    for i, f in enumerate(oo):
        n, w2 = i >> 2, f[2]
        S(smf(WC[n], WA[w2], loc[f]))
        stamp(S, cfg, f'wo{i}')
        if i in onxt:
            nf, sl = onxt[i]; lq += ld_lds(plan, nf, sl)
        if lq: S(lq.pop(0))
        if w2 == 1 and n > 0: vq += pack(n - 1)
        if vq: S(*vq.pop(0))
    for o in vq: S(*o)
    for j in range(2):
        for o in ld_frag(plan, seq[j], P[j]): S(o)
    for o in pack(na - 1): S(*o)
    stamp(S, cfg, 'woend')
    if red:
        L = AB[0]; DD = accK
        hl = [f'buffer_load_dword {V(L+j)}, {V(vL4)}, {SRD(sWS)}, s{sH1} offen offset:{j*256} sc1' for j in range(8)]
        aw = cf('ackwait', 0)
        if aw is not None: S.wait('vm', f'h1s{min(w + aw, na - 1)}')
        pause(S, cf('d_h1', [0, 0, 0])[w])
        stamp(S, cfg, 'ack')
        for o in hl: S(o)
        for o in zero4(accV): S(o)
        nm = f'L_c1_{uid}'
        mm = [f'v_mfma_f32_16x16x32_bf16 {V(DD,4)}, {V(L,4)}, {V(RS,4)}, 0', f'v_mfma_f32_16x16x32_bf16 {V(DD,4)}, {V(L+4,4)}, {V(RS,4)}, {V(DD,4)}']
        ck = check_ops(range(L, L+8), T, T0)
        S(mm[0]); S(ck[0]); S(mm[1])
        for o in ck[1:]: S(o)
        S(f's_cbranch_vccnz {nm}_r'); S(f'{nm}:')
        retry(nm, 1, hl, range(L, L+8), T, T0, mm)
        S(f'v_cvt_pk_bf16_f32 {V(T2)}, {V(DD)}, {V(DD+1)}')
        S(f'v_cvt_pk_bf16_f32 {V(T3)}, {V(DD+2)}, {V(DD+3)}')
        S(tagop(T2, T)); S(tagop(T3, T))
        S(f'buffer_store_dwordx2 {V(T2,2)}, {V(vSL)}, {SRD(sWS)}, s{sSLl} offen {st}', tag='sl')
        srs = f'buffer_store_dwordx2 {V(T2,2)}, {V(vSL)}, {SRD(sWS)}, s{sSLr} offen sc1'
        if cf('sr', 0) == 0: S(srs, tag='sr')
        stamp(S, cfg, 'h1end')
        for r in (accQ, accK):
            for o in zero4(r): S(o)
        if cf('slwait', True): S.wait('vm', 'sl')
    else:
        stamp(S, cfg, 'ack'); stamp(S, cfg, 'h1end')
        for r in (accQ, accK, accV):
            for o in zero4(r): S(o)
        if flagld:
            nm = f'L_fl_{uid}'
            S(f'v_readfirstlane_b32 s{sT0}, {V(vSL)}\n s_and_b32 s{sT0}, s{sT0}, 0xffff\n s_cmp_lg_u32 s{sT0}, 32\n s_cbranch_scc1 {nm}_r\n {nm}:')
            X = Stream()
            X(f'{nm}_r:\n s_add_u32 s{sSpin}, s{sSpin}, 1\n s_cmp_gt_u32 s{sSpin}, {cfg.get("spin", 4000000)}\n s_cbranch_scc1 {fail}\n s_sleep 8')
            X(flagld); X(f'v_readfirstlane_b32 s{sT0}, {V(vSL)}\n s_and_b32 s{sT0}, s{sT0}, 0xffff\n s_cmp_lg_u32 s{sT0}, 32\n s_cbranch_scc1 {nm}_r\n s_branch {nm}')
            R.extend(finalize(X)[0])
        if fl and km: S.wait('vm', 'km')
    stamp(S, cfg, 'slack')
    S('s_barrier')
    stamp(S, cfg, 'bar0')
    if fl and km and w == 3:
        S(f'v_mov_b32 {V(vL4)}, s{sStep}\n s_mov_b64 exec, 1\n buffer_store_byte {V(vL4)}, off, {SRD(sDBG)}, s{sH} offset:{fl["prog"]*4} sc1\n s_mov_b64 exec, -1')
    if red and cf('sr', 0) == 1: S(srs, tag='sr')
    pause(S, cf('d_g1', 0))
    for g in g1: S(g[0])
    if red and cf('sr', 0) == 2: S(srs, tag='sr')
    if cf('early2', None) is not None:
        pause(S, cf('early2', 0))
        for g in g2:
            S(g[0])
    nm = f'L_c3_{uid}'
    g1r = [x for g in g1 for x in g[2]]
    if cf('pipe3', None) is not None:
        g1b = [gather(AB[1], sGA, base1 + w*1024)]
        if len(g1) > 1: g1b.append(gather(AB[2], sGC, base1 + 4096 + w*1024))
        g1br = [x for g in g1b for x in g[2]]
        pause(S, cf('pipe3', 0))
        for g in g1b: S(g[0])
        for o in check_ops(g1r, T, T0): S(o)
        for g in g1: S(g[1], tag='aw')
        S(f's_cbranch_vccnz {nm}_r'); S(f'{nm}:')
        X = Stream(); n1 = len(g1)
        X(f'{nm}_r:')
        X(f's_add_u32 s{sSpin}, s{sSpin}, 1')
        if cfg.get('count'): X(f's_add_u32 s90, s90, 1')
        X(f's_cmp_gt_u32 s{sSpin}, {cfg.get("spin", 4000000)}\n s_cbranch_scc1 {fail}')
        for g in g1: X(g[0])
        X(f's_waitcnt vmcnt({n1})')
        for o in check_ops(g1br, T, T0): X(o)
        X(f's_cbranch_vccnz {nm}_r2')
        for g in g1b: X(g[1])
        X(f's_branch {nm}')
        X(f'{nm}_r2:')
        for g in g1b: X(g[0])
        X(f's_waitcnt vmcnt({n1})')
        for o in check_ops(g1r, T, T0): X(o)
        X(f's_cbranch_vccnz {nm}_r')
        for g in g1: X(g[1])
        X(f's_branch {nm}')
        R.extend([l for l in finalize(X)[0]])
    else:
        for o in check_ops(g1r, T, T0): S(o)
        for g in g1: S(g[1], tag='aw')
        S(f's_cbranch_vccnz {nm}_r'); S(f'{nm}:')
        retry(nm, 3, [g[0] for g in g1], g1r, T, T0, [g[1] for g in g1])
    stamp(S, cfg, 'h2end')
    if red and cf('sr', 0) == 3: S(srs, tag='sr')
    if cf('early2', None) is None and cf('g2_at', -1) < 0:
        for g in g2: S(g[0])
    if cfg.get('stamps') and not cfg.get('trace'):
        S('s_waitcnt lgkmcnt(0)')
        for i in range(len(cfg['stamps']) - 1):
            S(f's_sub_u32 s{sT0}, s{sStamp+2*i+2}, s{sStamp+2*i}\n s_add_u32 s{80+i}, s{80+i}, s{sT0}')
    if cfg.get('trace'):
        S('s_waitcnt lgkmcnt(0)')
        for i in range(len(cfg['stamps'])): S(f'v_writelane_b32 {V(T1)}, s{sStamp+2*i}, {i}')
        for i in range(3): S(f'v_writelane_b32 {V(T1)}, s{88+i}, {13+i}')
        S(f's_mov_b64 exec, 0xffff\n buffer_store_dword {V(T1)}, {V(vL4)}, {SRD(sWS)}, s46 offen\n s_mov_b64 exec, -1\n s_add_u32 s46, s46, 64')
    S('s_waitcnt lgkmcnt(0)'); S('s_barrier')

def rowpart(f):
    if f[0] == 'O': return 32 * f[2]
    k = f[1]; tau, hf = k >> 1, k & 1
    return 128 * (tau >> 1) + 16 * hf + (tau & 1)

def prologue(S, plan, cfg, karg):
    st = cfg.get('st', '')
    c = plan.c
    ln = 63
    aQ0, aQ1, aO0, aO1, vRD = 64, 65, 66, 67, 68
    S(f'''
    s_load_dwordx2 s[60:61], s[0:1], {karg["Wq"]}
    s_load_dwordx2 s[62:63], s[0:1], {karg["Wk"]}
    s_load_dwordx2 s[64:65], s[0:1], {karg["Wv"]}
    s_load_dwordx2 s[66:67], s[0:1], {karg["Wo"]}
    s_load_dwordx2 s[68:69], s[0:1], {karg["mem0"]}
    v_mov_b32 {V(ln)}, v0
    v_lshlrev_b32 {V(vL16)}, 4, {V(ln)}
    v_lshlrev_b32 {V(vL4)}, 2, {V(ln)}
    v_and_b32 v76, 15, {V(ln)}
    v_lshrrev_b32 v77, 4, {V(ln)}
    v_lshrrev_b32 v78, 1, v77
    v_and_b32 v79, 1, v77
    v_lshlrev_b32 v74, 4, v76
    v_lshlrev_b32 v75, 6, v79
    v_xor_b32 v74, v74, v75
    s_lshr_b32 s{sT0}, s{sWv}, 1
    s_and_b32 s{sT1}, s{sWv}, 1
    s_lshl_b32 s70, s{sT0}, 6
    s_lshl_b32 s71, s{sT1}, 2
    s_add_u32 s70, s70, s71
    v_lshlrev_b32 v75, 5, v78
    v_lshl_add_u32 v75, v79, 3, v75
    v_add_u32 v75, s70, v75
    v_lshlrev_b32 v75, 13, v75
    s_lshl_b32 s71, s{sH}, 8
    v_add3_u32 {V(aQ0)}, v75, v74, s71
    v_add_u32 {V(aQ1)}, {2*8192 - 1024}, {V(aQ0)}
    s_lshl_b32 s70, s{sT0}, 4
    s_lshl_b32 s71, s{sT1}, 1
    s_add_u32 s70, s70, s71
    s_lshl_b32 s71, s{sH}, 7
    s_add_u32 s70, s70, s71
    v_lshlrev_b32 v75, 3, v78
    v_lshl_add_u32 v75, v79, 2, v75
    v_add_u32 v75, s70, v75
    v_mul_u32_u24 v75, 1280, v75
    v_add_u32 {V(aO0)}, v75, v74
    v_add_u32 {V(aO1)}, {1280 - 1024}, {V(aO0)}
    v_xor_b32 v75, s{sWv}, v79
    v_lshlrev_b32 v75, 6, v75
    v_lshl_add_u32 v75, v77, 8, v75
    v_lshl_add_u32 {V(vRD)}, v76, 2, v75
    v_add_u32 {V(vRD)}, {L_W}, {V(vRD)}
    v_add_u32 {V(vRD+1)}, 36864, {V(vRD)}
    v_add_u32 {V(vRD+2)}, 36864, {V(vRD+1)}
    v_add_u32 {V(vRD+3)}, 36864, {V(vRD+2)}
    s_mul_i32 s72, s{sWv}, 36864
    s_add_u32 s72, s72, {L_W}
    v_add_u32 {V(vWL)}, s72, {V(vL16)}
    s_lshl_b32 s{sT0}, s{sH}, 2
    s_add_u32 s{sT0}, s{sT0}, s{sWv}
    s_lshl_b32 s{sT1}, s{sT0}, 12
    s_add_u32 s{sKV}, s{sT1}, {WS_KVX}
    s_mov_b32 s{sKV2}, s{sKV}
    s_lshl_b32 s{sT1}, s{sT0}, 10
    s_add_u32 s{sKM}, s{sT1}, {WS_KMVM}
    s_mov_b32 s{sW+2}, {640*4096*2}
    s_mov_b32 s{sW+3}, 0x20000
    ''')
    S('s_waitcnt lgkmcnt(0)')
    base = {'Q': 60, 'K': 62, 'V': 64, 'O': 66}
    order = {'Q': 0, 'K': 1, 'V': 2, 'O': 3}
    units = sorted(list(plan.reg.keys()), key=lambda f: (order[f[0]],) + f[1:])
    assert len(units) % 18 == 0
    units += list(plan.lds)
    cur = [None]
    def issue(u):
        f = units[u]; kind = f[0]; slot = u % 18
        if cur[0] != kind:
            S(f's_mov_b32 s{sW}, s{base[kind]}\n s_mov_b32 s{sW+1}, s{base[kind]+1}'); cur[0] = kind
        off = rowpart(f) * 1280 + f[1] * 256 if kind == 'O' else rowpart(f) * 8192
        a0, a1 = (aO0, aO1) if kind == 'O' else (aQ0, aQ1)
        S(f's_add_u32 m0, s72, {slot*2048}\n s_mov_b32 s{sT0}, {off}')
        S(f'buffer_load_dwordx4 {V(a0)}, {SRD(sW)}, s{sT0} offen lds', tag=f'u{u}')
        S(f'buffer_load_dwordx4 {V(a1)}, {SRD(sW)}, s{sT0} offen offset:1024 lds', tag=f'u{u}')
    tmp = [16, 24]
    def dst(u):
        f = units[u]
        return plan.reg[f] if f in plan.reg else tmp[u & 1]
    def post(u):
        f = units[u]; src = dst(u)
        if f in plan.lds:
            i = plan.lds.index(f)
            for hh in range(2): S(f'ds_write_b128 {V(vWL)}, {V(src+4*hh,4)} offset:{i*2048+hh*1024}')
    for u in range(18): issue(u)
    consts(S, plan, cfg, ln)
    for u in range(len(units)):
        S.wait('vm', f'u{u}'); S('s_waitcnt lgkmcnt(0)'); S('s_barrier')
        if u > 0:
            post(u - 1)
            if u + 17 < len(units): issue(u + 17)
        for w2 in range(4):
            S(f'ds_read2st64_b32 {Rg(dst(u)+2*w2,2)}, {V(vRD+w2)} offset0:{(u%18)*8} offset1:{(u%18)*8+4}')
    S('s_waitcnt lgkmcnt(0)'); S('s_barrier'); post(len(units) - 1)
    S(f'''
    s_mov_b32 s{sW}, s68
    s_mov_b32 s{sW+1}, s69
    s_mov_b32 s{sW+2}, 10240
    v_and_b32 v76, 15, {V(ln)}
    v_lshrrev_b32 v77, 4, {V(ln)}
    v_lshrrev_b32 v74, 2, v76
    v_lshlrev_b32 v74, 1, v74
    v_and_b32 v75, 1, {V(ln)}
    v_add_u32 v74, v74, v75
    v_mul_u32_u24 v74, 1280, v74
    v_lshl_add_u32 v74, v77, 6, v74
    v_bfe_u32 v75, {V(ln)}, 1, 1
    v_lshl_add_u32 v74, v75, 5, v74
    s_lshr_b32 s{sT0}, s{sWv}, 1
    s_lshl_b32 s{sT0}, s{sT0}, 8
    s_and_b32 s{sT1}, s{sWv}, 1
    s_mul_i32 s{sT1}, s{sT1}, 0x02020202
    s_add_u32 s{sT1}, s{sT1}, 0x05040100
    ''')
    S(f's_lshl_b32 s70, s{sWv}, 10\n v_add_u32 v75, s70, {V(vL16)}')
    for t0, d in ((2*plan.own[0], AB[3]), (2*plan.rem[0], GB), (4, GC)):
        S(f'buffer_load_dwordx4 v[48:51], v74, {SRD(sW)}, s{sT0} offen offset:{t0*128}')
        S(f'buffer_load_dwordx4 v[52:55], v74, {SRD(sW)}, s{sT0} offen offset:{t0*128+16}')
        for r in range(4):
            S(f'v_perm_b32 {V(d+r)}, {V(49+2*r)}, {V(48+2*r)}, s{sT1}')
        S(f'ds_write_b128 v75, {V(d,4)} offset:{L_MEM + t0*1024}')
    S('s_waitcnt vmcnt(0) lgkmcnt(0)')
    for j in range(2):
        for o in ld_frag(plan, plan.seq[j], P[j]): S(o)
    for r in (accQ, accK, accV):
        for o in zero4(r): S(o)
    S(f's_mov_b32 s{sStep}, 0\n s_mov_b32 s{sSpin}, 0\n s_mov_b32 s{sForce}, 1')
    if cfg.get('stamps') or cfg.get('count'):
        for i in range(11): S(f's_mov_b32 s{80+i}, 0')
        S(f's_lshl_b32 s46, s{sH}, 2\n s_add_u32 s46, s46, s{sWv}\n s_add_u32 s46, s46, {128*c}\n s_lshl_b32 s46, s46, 12\n s_add_u32 s46, s46, 0x100000')
    S('s_waitcnt vmcnt(0) lgkmcnt(0)')

def apply_near(S, plan, sreg):
    S(f's_add_u32 s{sSLr}, s{sSLr}, s{sreg}\n s_add_u32 s{sGB}, s{sGB}, s{sreg}')
    if plan.c == 1: S(f's_add_u32 s{sGC}, s{sGC}, s{sreg}')

def first_kv(S):
    for o in ld_kv(0, KX): S(o)
    S('s_waitcnt vmcnt(0)')

def consts(S, plan, cfg, ln):
    st = cfg.get('st', '')
    c = plan.c; a0 = plan.own[0]; na = len(plan.own)
    S(f'''
    v_and_b32 v76, 15, {V(ln)}
    v_lshrrev_b32 v77, 4, {V(ln)}
    v_bfe_u32 v75, {V(ln)}, 1, 1
    v_mov_b32 v74, 0x88888888
    v_mov_b32 v78, 0xdddddddd
    v_cmp_eq_u32 vcc, 1, v75
    v_cndmask_b32 {V(vIDX)}, v74, v78, vcc
    v_and_b32 v79, 1, {V(ln)}
    v_lshlrev_b32 v74, 4, v79
    v_mov_b32 v78, 0x3f80
    v_lshlrev_b32 {V(vZ)}, v74, v78
    v_and_b32 {V(vCS)}, 0x3d0, {V(vL16)}
    s_lshl_b32 s{sT0}, s{sWv}, 14
    s_lshl_b32 s{sT1}, s{sH}, 6
    s_add_u32 s{sT0}, s{sT0}, s{sT1}
    s_add_u32 s{sT0}, s{sT0}, {WS_MB1}
    v_lshlrev_b32 v74, 11, v77
    v_lshl_add_u32 v74, v76, 2, v74
    v_add_u32 {V(vH1S)}, s{sT0}, v74
    s_min_u32 s70, s{sWv}, {na - 1}
    s_lshl_b32 s{sT1}, s{sH}, 11
    s_lshl_b32 s{sT0}, s70, 16
    s_add_u32 s{sT0}, s{sT0}, s{sT1}
    s_add_u32 s{sH1}, s{sT0}, {WS_MB1 + a0*65536}
    s_bfe_u32 s{sT0}, s{sH}, 0x10002
    s_lshl_b32 s{sT0}, s{sT0}, 10
    s_lshr_b32 s{sT1}, s{sH}, 3
    s_lshl_b32 s{sT1}, s{sT1}, 8
    s_add_u32 s{sT0}, s{sT0}, s{sT1}
    s_and_b32 s{sT1}, s{sH}, 3
    s_lshl_b32 s{sT1}, s{sT1}, 6
    s_add_u32 s{sT0}, s{sT0}, s{sT1}
    v_lshrrev_b32 v74, 1, v77
    v_lshlrev_b32 v74, 5, v74
    v_lshl_add_u32 v74, v79, 4, v74
    v_and_b32 v78, 1, v77
    v_lshl_add_u32 v74, v78, 3, v74
    v_add_u32 v74, s{sT0}, v74
    v_cmp_gt_u32 vcc, 2, v76
    v_mov_b32 v78, 0x7ffffff0
    v_cndmask_b32 {V(vSL)}, v78, v74, vcc
    s_lshl_b32 s{sT0}, s70, 11
    s_add_u32 s{sSLl}, s{sT0}, {WS_MB2L + a0*2048}
    s_add_u32 s{sSLr}, s{sT0}, {WS_MB2R + c*16384 + cfg.get('near', 0)}
    s_mov_b32 s{sC}, {f2u(128**-0.5 * math.log2(math.e))}
    s_lshl_b32 s{sT0}, s{sWv}, 10
    s_add_u32 s{sGA}, s{sT0}, {WS_MB2L + a0*2048}
    s_add_u32 s{sGB}, s{sT0}, {WS_MB2R + (1-c)*16384 + cfg.get('near', 0)}
    s_add_u32 s{sGC}, s{sGA if c == 0 else sGB}, 4096
    s_mov_b32 s{mA}, 0xcccccccc
    s_mov_b32 s{mA+1}, 0xcccccccc
    s_mov_b32 s{mR}, 0x00030003
    s_mov_b32 s{mR+1}, 0x00030003
    v_mov_b32 v12, 1
    v_mov_b32 v13, 1
    v_mov_b32 v14, 1
    v_mov_b32 v15, 1
    buffer_store_dwordx4 v[12:15], {V(vL16)}, {SRD(sWS)}, s{sH1} offen {st}
    buffer_store_dwordx4 v[12:15], {V(vL16)}, {SRD(sWS)}, s{sH1} offen offset:1024 {st}
    buffer_store_dwordx2 v[12:13], {V(vSL)}, {SRD(sWS)}, s{sSLl} offen {st}
    {'' if cfg.get('fresh', True) else f'buffer_store_dwordx2 v[12:13], {V(vSL)}, {SRD(sWS)}, s{sSLr} offen sc1'}
    ''')
    if cfg.get('fresh', True):
        S(f'''
        s_lshl_b32 s{sT0}, s{sH}, 16
        s_lshl_b32 s{sT1}, s{sWv}, 12
        s_add_u32 s{sT0}, s{sT0}, s{sT1}
        s_add_u32 s{sT0}, s{sT0}, {WS_MB2R + c*16384}
        s_add_u32 s{sT1}, s{sT0}, 32768
        v_mov_b32 v16, 0
        v_mov_b32 v17, 0
        v_mov_b32 v18, 0
        v_mov_b32 v19, 0
        ''')
        for j in range(4):
            S(f'buffer_store_dwordx4 v[16:19], {V(vL16)}, {SRD(sWS)}, s{sT0} offen offset:{j*1024} sc1')
            S(f'buffer_store_dwordx4 v[12:15], {V(vL16)}, {SRD(sWS)}, s{sT1} offen offset:{j*1024} sc1')
    mq = sum(3 << (20*g + 2) for g in range(4)); mk = sum(3 << (20*g) for g in range(4))
    S(f's_mov_b32 s{mSq}, {mq & 0xffffffff}\n s_mov_b32 s{mSq+1}, {mq >> 32}\n s_mov_b32 s{mSk}, {mk & 0xffffffff}\n s_mov_b32 s{mSk+1}, {mk >> 32}')

def loops(plan, cfg, pref='L_chain'):
    out = []
    for w in range(4):
        S = Stream(); R = []
        step(S, R, plan, w, 0, cfg, f'{pref}{w}e')
        step(S, R, plan, w, 1, cfg, f'{pref}{w}o')
        S(f's_branch {pref}_w{w}')
        body = finalize_loop(S)
        out.append('.p2align 6'); out.append(f'{pref}_w{w}:'); out += body; out += R
    return out
```

```python
from sched import Stream, finalize, finalize_loop, State
from chain3 import V, SRD, SP, f2u
def A(a, n=1): return f'a{a}' if n == 1 else f'a[{a}:{a+n-1}]'

sWS, sDBG = 4, 8
sX, sW0, sW1, sO = 12, 20, 24, 28
sWv, sId, sSpin = 17, 16, 19
sXo, sW0o, sW1o, sLdw4, sLdw64, sM0x, sM0w, sT0, sT1, sT2, sKs = 32, 33, 34, 35, 36, 37, 38, 39, 40, 41, 42
sE0, sE1, sE2, sE3 = 43, 44, 45, 46
vLn = 0
vXa, vXb, vW = 1, 2, 3
vXr = 4
vWT = 8
vWN = 12
vE = 16
XF = [24, 32]
WF = [40, 72]
EP = 104
def acc(j, mt, nt): return ((j * 2 + mt) * 4 + nt) * 16

def setup_lane_consts(S):
    S(f'''
    v_lshrrev_b32 v16, 3, {V(vLn)}
    v_mul_u32_u24 v16, 1280, v16
    v_and_b32 v17, 7, {V(vLn)}
    v_lshrrev_b32 v18, 4, {V(vLn)}
    v_xor_b32 v17, v17, v18
    v_lshl_add_u32 {V(vXa)}, v17, 4, v16
    v_xor_b32 {V(vXb)}, 64, {V(vXa)}
    v_and_b32 v16, 31, {V(vLn)}
    v_and_b32 v17, 0x13, v16
    v_bfe_u32 v18, v16, 2, 1
    v_lshl_add_u32 v17, v18, 3, v17
    v_bfe_u32 v18, v16, 3, 1
    v_lshl_add_u32 v17, v18, 2, v17
    v_bfe_u32 v18, v17, 1, 3
    v_lshrrev_b32 v19, 5, {V(vLn)}
    v_xor_b32 v18, v18, v19
    v_lshlrev_b32 v18, 4, v18
    v_lshl_add_u32 v18, v17, 7, v18
    s_lshl_b32 s{sT0}, s{sWv}, 13
    v_add_u32 {V(vXr)}, s{sT0}, v18
    v_xor_b32 {V(vXr+1)}, 32, {V(vXr)}
    v_xor_b32 {V(vXr+2)}, 64, {V(vXr)}
    v_xor_b32 {V(vXr+3)}, 0x60, {V(vXr)}
    v_bfe_u32 v16, {V(vLn)}, 2, 2
    v_lshl_add_u32 v17, v19, 3, v16
    v_lshlrev_b32 v17, 8, v17
    v_lshl_add_u32 v17, v16, 6, v17
    v_bfe_u32 v18, {V(vLn)}, 4, 1
    v_lshl_add_u32 v17, v18, 5, v17
    v_and_b32 v18, 1, {V(vLn)}
    v_bfe_u32 v19, {V(vLn)}, 1, 1
    v_lshl_add_u32 v16, v18, 4, v17
    v_lshl_add_u32 {V(vWT)}, v19, 3, v16
    v_lshl_add_u32 v16, v19, 4, v17
    v_lshl_add_u32 {V(vWN)}, v18, 3, v16
    ''')
    for b in (vWT, vWN):
        for nt in range(1, 4): S(f'v_xor_b32 {V(b+nt)}, {nt*64}, {V(b)}')
    S(f's_lshl_b32 s{sM0x}, s{sWv}, 13\n s_lshl_b32 s{sM0w}, s{sWv}, 12\n s_add_u32 s{sM0w}, s{sM0w}, 32768')

def setup_task(S, ldw_sreg):
    S(f'''
    s_mul_i32 s{sT0}, s{sWv}, {64*1280}
    s_add_u32 s{sXo}, s{sXo}, s{sT0}
    s_lshl_b32 s{sLdw4}, s{ldw_sreg}, 2
    s_lshl_b32 s{sLdw64}, s{ldw_sreg}, 6
    v_lshrrev_b32 v16, 4, {V(vLn)}
    s_lshl_b32 s{sT0}, s{sWv}, 4
    v_add_u32 v17, s{sT0}, v16
    v_mul_lo_u32 v17, v17, s{ldw_sreg}
    v_lshlrev_b32 v16, 2, v16
    v_and_b32 v18, 15, {V(vLn)}
    v_xor_b32 v16, v16, v18
    v_lshl_add_u32 {V(vW)}, v16, 4, v17
    ''')

def dma_ops(stage, xfl='', wfl=''):
    G = []
    for i in range(8):
        G.append(f's_add_u32 m0, s{sM0x}, {stage*65536 + i*1024}\n s_add_u32 s{sT0}, s{sXo}, {i*10240}\n buffer_load_dwordx4 {V(vXb if i & 1 else vXa)}, {SRD(sX)}, s{sT0} offen {xfl} lds')
    for j in range(2):
        so, srd = (sW0o, sW0) if j == 0 else (sW1o, sW1)
        for i in range(4):
            pre = f's_mov_b32 s{sT1}, s{so}' if i == 0 else f's_add_u32 s{sT1}, s{sT1}, s{sLdw4}'
            G.append(f's_add_u32 m0, s{sM0w}, {stage*65536 + j*16384 + i*1024}\n {pre}\n buffer_load_dwordx4 {V(vW)}, {SRD(srd)}, s{sT1} offen {wfl} lds')
    G[7] += f'\n s_add_u32 s{sXo}, s{sXo}, 128'
    G[-1] += f'\n s_add_u32 s{sW0o}, s{sW0o}, s{sLdw64}\n s_add_u32 s{sW1o}, s{sW1o}, s{sLdw64}'
    return G[8:] + G[:8]

def read_ops(ks, buf, ori):
    R = [f'ds_read_b128 {V(XF[buf]+4*mt,4)}, {V(vXr+ks)} offset:{mt*4096}' for mt in range(2)]
    Wr = []
    for j in range(2):
        b = vWT if ori[j] == 'T' else vWN
        for nt in range(4):
            for jj in range(2):
                Wr.append(f'ds_read_b64_tr_b16 {V(WF[buf]+16*j+4*nt+2*jj,2)}, {V(b+nt)} offset:{32768 + j*16384 + ks*4096 + jj*1024}')
    return [R[0], Wr[0], Wr[1], R[1]] + Wr[2:]

def mfma_ops(buf, ori, zero=False):
    M = []
    for j in range(2):
        for nt in range(4):
            for mt in range(2):
                x = V(XF[buf] + 4*mt, 4); w = V(WF[buf] + 16*j + 4*nt, 4); d = A(acc(j, mt, nt), 16)
                a, b = (w, x) if ori[j] == 'T' else (x, w)
                M.append(f'v_mfma_f32_32x32x16_bf16 {d}, {a}, {b}, {"0" if zero else d}')
    return M

def interleave(S, mf, side, per=2):
    side = list(side)
    for m in mf:
        S(m)
        for _ in range(per):
            if side: S(side.pop(0))
    for o in side: S(o)

def toggle_ops():
    return [f'v_xor_b32 {V(r)}, 0x10000, {V(r)}' for r in list(range(vXr, vXr+4)) + list(range(vWT, vWT+4)) + list(range(vWN, vWN+4))]

def mix(reads, extra, n=16):
    reads = list(reads); extra = list(extra); out = []
    for i in range(n):
        o = [reads.pop(0) for _ in range(2) if reads]
        if extra and (i & 1): o.append(extra.pop(0))
        out.append(o)
    out[-1] += reads + extra
    return out
def weave(S, mf, sides):
    for m, sd in zip(mf, sides):
        S(m)
        for o in sd: S(o)

def core(ori, name, xfl='', wfl=''):
    P = Stream()
    for g in dma_ops(0, xfl, wfl): P(g)
    d1 = dma_ops(1, xfl, wfl)
    for g in d1[:8]: P(g)
    P('s_waitcnt vmcnt(8)\n s_barrier')
    for o in read_ops(0, 0, ori): P(o)
    weave(P, mfma_ops(0, ori, zero=True), mix(read_ops(1, 1, ori), d1[8:]))
    P(f's_mov_b32 s{sKs}, 0')
    P(f's_waitcnt lgkmcnt(0)\n s_branch {name}_in')
    tg = toggle_ops()
    def stage(S, st, dma_a, dma_b, label=None, last=False):
        weave(S, mfma_ops(0, ori), mix(read_ops(1, 1, ori), dma_a))
        if label: S(f'{label}:')
        weave(S, mfma_ops(1, ori), mix(read_ops(2, 0, ori), []))
        sd = mix(read_ops(3, 1, ori), [])
        for k in range(6): sd[10 + k] += tg[2*k:2*k+2]
        weave(S, mfma_ops(0, ori), sd)
        if last:
            weave(S, mfma_ops(1, ori), [[]] * 16)
        else:
            S('s_waitcnt vmcnt(0) lgkmcnt(0)\n s_barrier')
            weave(S, mfma_ops(1, ori), mix(read_ops(0, 0, ori), dma_b))
    d0 = dma_ops(0, xfl, wfl)
    L = Stream()
    stage(L, 0, d1[8:], d0[:8], f'{name}_in')
    stage(L, 1, d0[8:], d1[:8])
    L(f's_add_u32 s{sKs}, s{sKs}, 1\n s_cmp_lt_u32 s{sKs}, 4\n s_cbranch_scc1 {name}_loop')
    body = finalize_loop(L)
    F = Stream()
    F('s_waitcnt lgkmcnt(0)')
    stage(F, 0, d1[8:], [])
    stage(F, 1, [], [], last=True)
    F('s_nop 7\n s_nop 7')
    return finalize(P)[0] + ['.p2align 6', f'{name}_loop:'] + body + finalize(F)[0]

def tile_pack(S, a0, dst, scale=None):
    t = EP + 32
    for r in range(16): S(f'v_accvgpr_read_b32 {V(t+r)}, {A(a0+r)}')
    if scale is not None:
        for r in range(16): S(f'v_mul_f32 {V(t+r)}, s{scale}, {V(t+r)}')
    for r in range(8): S(f'v_cvt_pk_bf16_f32 {V(dst+r)}, {V(t+2*r)}, {V(t+2*r+1)}')

def lane_key(S, d, t):
    S(f'''
    v_and_b32 {V(d)}, 0x13, {V(vLn)}
    v_bfe_u32 {V(t)}, {V(vLn)}, 2, 1
    v_lshl_add_u32 {V(d)}, {V(t)}, 3, {V(d)}
    v_bfe_u32 {V(t)}, {V(vLn)}, 3, 1
    v_lshl_add_u32 {V(d)}, {V(t)}, 2, {V(d)}
    ''')

def frag_addr_T(S, d):
    S(f'''
    v_bfe_u32 v17, {V(vLn)}, 3, 1
    v_lshlrev_b32 {V(d)}, 10, v17
    v_bfe_u32 v17, {V(vLn)}, 4, 1
    v_lshl_add_u32 {V(d)}, v17, 7, {V(d)}
    v_bfe_u32 v17, {V(vLn)}, 2, 1
    v_lshl_add_u32 {V(d)}, v17, 6, {V(d)}
    v_and_b32 v17, 3, {V(vLn)}
    v_lshl_add_u32 {V(d)}, v17, 4, {V(d)}
    v_lshrrev_b32 v17, 5, {V(vLn)}
    v_lshl_add_u32 {V(d)}, v17, 8, {V(d)}
    ''')
def frag_addr_N(S, d):
    S(f'''
    v_and_b32 v17, 1, {V(vLn)}
    v_lshlrev_b32 {V(d)}, 10, v17
    v_bfe_u32 v17, {V(vLn)}, 1, 4
    v_lshl_add_u32 {V(d)}, v17, 4, {V(d)}
    v_lshrrev_b32 v17, 5, {V(vLn)}
    v_lshl_add_u32 {V(d)}, v17, 8, {V(d)}
    ''')

def epi_frags(S, kinds, seg_stride, nt_stride, j_off, j_off_sreg=None):
    frag_addr_T(S, vE + 2); frag_addr_N(S, vE + 3)
    n = 0
    for j in range(2):
        av = vE + 2 if kinds[j] == 'T' else vE + 3
        for mt in range(2):
            for nt in range(4):
                d = EP + 8 * (n & 3); n += 1
                tile_pack(S, acc(j, mt, nt), d)
                S(f's_add_u32 s{sT0}, s{sE0}, {mt*seg_stride + nt*nt_stride + j*j_off}')
                for u in range(2):
                    S(f'buffer_store_dwordx4 {V(d+4*u,4)}, {V(av)}, {SRD(sWS)}, s{sT0} offen offset:{u*512} sc1')

def epi_rows(S, ld, srd, fl, scale=None, nj_sreg=None, uid=''):
    S(f'''
    v_and_b32 {V(vE+2)}, 3, {V(vLn)}
    v_bfe_u32 v17, {V(vLn)}, 2, 1
    v_lshl_add_u32 {V(vE+2)}, v17, 3, {V(vE+2)}
    v_bfe_u32 v17, {V(vLn)}, 3, 1
    v_lshl_add_u32 {V(vE+2)}, v17, 2, {V(vE+2)}
    v_mul_u32_u24 {V(vE+2)}, {ld}, {V(vE+2)}
    v_lshrrev_b32 v17, 5, {V(vLn)}
    v_lshl_add_u32 {V(vE+2)}, v17, 4, {V(vE+2)}
    v_bfe_u32 v17, {V(vLn)}, 4, 1
    v_lshl_add_u32 {V(vE+2)}, v17, 5, {V(vE+2)}
    ''')
    n = 0
    for j in range(2):
        if j == 1 and nj_sreg is not None:
            S(f's_cmp_lt_u32 s{nj_sreg}, 2\n s_cbranch_scc1 L_rows_done{uid}')
        for mt in range(2):
            S(f's_add_u32 s{sT0}, s{sE0}, {mt*32*ld + j*256}\n s_add_u32 s{sT1}, s{sT0}, {16*ld}')
            for nt in range(4):
                d = EP + 8 * (n & 3); n += 1
                tile_pack(S, acc(j, mt, nt), d, scale)
                for r in range(4): S(f'v_permlane16_swap_b32 {V(d+r)}, {V(d+4+r)}')
                for u in range(2):
                    S(f'buffer_store_dwordx4 {V(d+4*u,4)}, {V(vE+2)}, {SRD(srd)}, s{sT1 if u else sT0} offen offset:{nt*64} {fl}')
    if nj_sreg is not None: S(f'L_rows_done{uid}:')

def epi_akv(S):
    S(f'''
    v_lshlrev_b32 {V(vE+2)}, 4, {V(vLn)}
    v_and_b32 v17, 31, {V(vLn)}
    v_cmp_eq_u32 vcc, 20, v17
    v_mov_b32 v17, 0x3f803f80
    ''')
    for j in range(2):
        for mt in range(2):
            d = EP + 8 * (2*j + mt)
            tile_pack(S, acc(j, mt, 0), d)
            if j == 1:
                for r in range(8): S(f'v_cndmask_b32 {V(d+r)}, {V(d+r)}, v17, vcc')
            S(f's_add_u32 s{sT0}, s{sE0}, {mt*4096}')
            for u in range(2):
                S(f'buffer_store_dwordx4 {V(d+4*u,4)}, {V(vE+2)}, {SRD(sWS)}, s{sT0} offen offset:{j*2048 + u*1024} sc1')
```

```python
from chain3 import WS_MB1, WS_MB2L, WS_MB2R, WS_KMVM, WS_KVX, WS_CHAIN_END
WS_QX  = 0x3000000
WS_O   = 0x4000000
WS_QA  = 0x5000000
WS_OA  = 0x5400000
WS_KVA = 0x5800000
assert WS_CHAIN_END <= WS_QX
KARG = dict(Ax=0, Awq=8, Awk=16, Awv=24, Awo=32, Bx=40, mem0=48, Wq=56, Wk=64, Wv=72, Wo=80, out=96, dbg=104, ws=112)
D_TICKET = 0
D_READY = 8
D_NEAR = 9
D_KVQ = 10
D_APROJ = 18
D_OVER = 19
D_T5 = 20
D_PROG = 28
D_T2 = 36
```

```python
import re
_REG = re.compile(r'\b([vas])(\d+)\b|\b([vas])\[(\d+):(\d+)\]|\b(vcc|exec|m0|scc)\b')
def regs_of(tok):
    out = []
    for m in _REG.finditer(tok):
        if m.group(1):
            out.append((m.group(1), int(m.group(2))))
        elif m.group(3):
            out += [(m.group(3), i) for i in range(int(m.group(4)), int(m.group(5)) + 1)]
        else:
            out.append((m.group(6), 0))
    return out
TRANS = ('v_exp_f32', 'v_log_f32', 'v_rcp_f32', 'v_rsq_f32', 'v_sqrt_f32', 'v_sin_f32', 'v_cos_f32', 'v_rcp_iflag_f32')
NODST_S = ('s_cmp', 's_cbranch', 's_waitcnt', 's_barrier', 's_nop', 's_branch', 's_setprio', 's_sleep', 's_endpgm', 's_bitcmp', 's_setreg')
class I:
    __slots__ = ('text', 'op', 'kind', 'rd', 'wr', 'srcA', 'srcB', 'srcC', 'passes', 'data', 'tag', 'dpp', 'ncnt')
    def __init__(self, text, tag=None):
        self.text = text; self.tag = tag
        t = text.split(';')[0].strip()
        self.srcA = self.srcB = self.srcC = (); self.passes = 0; self.data = (); self.dpp = False; self.ncnt = 0
        if t.endswith(':') or t.startswith('.') or not t:
            self.op = t; self.kind = 'label'; self.rd = self.wr = (); return
        sp = t.split(None, 1)
        self.op = op = sp[0]
        ops = [x.strip() for x in re.split(r',(?![^\[]*\])', sp[1])] if len(sp) > 1 else []
        R = [regs_of(o) for o in ops]
        flat = lambda L: tuple(x for l in L for x in l)
        if op.startswith(('v_mfma', 'v_smfmac')):
            self.kind = 'mfma'
            self.passes = 8 if '32x32' in op else 4
            self.wr = tuple(R[0]); self.srcA = tuple(R[1]); self.srcB = tuple(R[2])
            if op.startswith('v_smfmac'):
                self.srcC = tuple(R[0]); self.srcB = self.srcB + tuple(R[3])
            else:
                self.srcC = tuple(R[3])
            self.rd = self.srcA + self.srcB + self.srcC
        elif op.startswith('v_'):
            self.kind = 'valu'
            self.dpp = ('_dpp' in op) or ('quad_perm' in t) or ('row_' in t)
            if op.startswith('v_permlane') or op.startswith('v_swap'):
                self.wr = flat(R[:2]); self.rd = flat(R)
            elif op == 'v_nop':
                self.wr = self.rd = ()
            else:
                nd = 2 if re.match(r'v_(add|sub|subrev|addc|subb)_co_|v_div_scale|v_mad_u64', op) else 1
                self.wr = flat(R[:nd]); self.rd = flat(R[nd:])
                if op.startswith(('v_fmac', 'v_dot2c', 'v_mac')) or self.dpp or 'sdwa' in op or op.startswith('v_writelane'):
                    self.rd += tuple(R[0])
                if op.startswith('v_cmpx'):
                    self.wr += (('exec', 0),)
        elif op.startswith(('buffer_', 'global_')):
            self.kind = 'vmem'
            toks = t.split()
            if op.startswith(('buffer_wbl2', 'buffer_inv')):
                self.rd = self.wr = ()
            elif op.startswith('buffer_load') and 'lds' in toks:
                self.wr = (); self.rd = flat(R) + (('m0', 0),)
            elif '_load' in op:
                self.wr = tuple(R[0]); self.rd = flat(R[1:])
                if 'd16' in op: self.rd += tuple(R[0])
            elif '_atomic' in op:
                self.rd = flat(R); self.wr = tuple(R[0]) if 'sc0' in toks else ()
            else:
                self.wr = (); self.rd = flat(R)
                if op.endswith(('x3', 'x4')):
                    self.data = tuple(R[0]) if op.startswith('buffer') else tuple(R[1])
        elif op.startswith('ds_'):
            self.kind = 'lds'
            if op.startswith(('ds_read', 'ds_bpermute', 'ds_permute', 'ds_swizzle')) or '_rtn' in op:
                self.wr = tuple(R[0]); self.rd = flat(R[1:])
            else:
                self.wr = (); self.rd = flat(R)
        elif op.startswith(('s_load', 's_buffer_load', 's_memtime', 's_memrealtime', 's_atomic')):
            self.kind = 'smem'; self.wr = tuple(R[0]); self.rd = flat(R[1:])
        elif op.startswith('s_'):
            self.kind = 'salu'
            if op.startswith(NODST_S):
                self.wr = (); self.rd = flat(R)
                if op == 's_nop': self.ncnt = int(ops[0]) + 1
                if op.startswith('s_cbranch_vcc'): self.rd = (('vcc', 0),)
            else:
                self.wr = tuple(R[0]) if R else (); self.rd = flat(R[1:])
                if 'saveexec' in op: self.wr += (('exec', 0),)
        else:
            raise ValueError('unknown instruction: ' + text)

class Stream:
    def __init__(self):
        self.items = []
    def __call__(self, text, tag=None):
        lines = [l.strip() for l in text.split('\n') if l.strip()]
        for l in lines:
            self.items.append(I(l, tag))
    def wait(self, cls, tag):
        self.items.append(('wait', cls, tag))
    def extend(self, other):
        self.items += other.items

class State:
    def __init__(self):
        self.vm = []; self.lg = []
        self.t = 0
        self.last_mfma_t = -1000; self.last_mfma_len = 0; self.valu_block = -1000
        self.hist = []
        self.sm = []

def _ov(a, b):
    return bool(set(a) & set(b))

def required_gap(p, c):
    n = 0
    vr = lambda L: [x for x in L if x[0] in 'va' and x[0] != 'vcc']
    if p.kind == 'valu':
        pw = p.wr
        pv = [x for x in pw if x[0] in ('v', 'a')]
        ps = [x for x in pw if x[0] in ('s', 'vcc')]
        if c.kind == 'mfma' and _ov(pv, c.rd): n = max(n, 2)
        if c.kind == 'valu':
            if (c.dpp or c.op.startswith('v_permlane')) and _ov(pv, c.rd): n = max(n, 2)
            if c.op.startswith(('v_readlane', 'v_readfirstlane')) and _ov(pv, c.rd): n = max(n, 1)
            if p.op.startswith(TRANS) and not c.op.startswith(TRANS) and _ov(pv, c.rd): n = max(n, 1)
            if _ov(ps, c.rd): n = max(n, 4 if c.op.startswith(('v_readlane', 'v_writelane', 'v_div_fmas')) else 2)
            if ('exec', 0) in pw: n = max(n, 5 if c.dpp else 4 if c.op.startswith(('v_readlane', 'v_readfirstlane', 'v_writelane', 'v_permlane')) else 0)
        if c.kind in ('vmem', 'lds') and p.op.startswith(TRANS) and _ov(pv, c.rd): n = max(n, 1)
        if c.kind == 'vmem' and _ov(ps, c.rd): n = max(n, 5)
        if c.kind == 'mfma' and ('exec', 0) in pw: n = max(n, 4)
        if c.kind in ('salu', 'smem') and _ov([x for x in ps if x[0] == 's'], c.rd): n = max(n, 1)
    if p.kind == 'mfma':
        big = p.passes == 8
        if c.kind == 'mfma':
            if _ov(p.wr, c.srcA + c.srcB): n = max(n, 12 if big else 8)
            if _ov(p.wr, c.srcC) and not (p.wr == c.srcC and p.op == c.op): n = max(n, 10 if big else 6)
            if _ov(p.wr, c.wr) and not _ov(p.wr, c.srcC): n = max(n, 10 if big else 6)
        elif c.kind in ('valu', 'vmem', 'lds'):
            if _ov(p.wr, c.rd + c.wr): n = max(n, 12 if big else 8)
            if c.kind == 'valu' and _ov(p.srcC, c.wr): n = max(n, 7 if big else 3)
    if p.kind == 'vmem' and p.data and c.kind in ('valu', 'vmem', 'lds', 'mfma') and _ov(p.data, c.wr):
        n = max(n, 2)
    if p.kind == 'salu' and ('m0', 0) in p.wr and ('m0', 0) in c.rd and c.kind != 'salu': n = max(n, 1)
    return n

def _dist(seq, c, credit):
    t = 0; pipe = -1000; vb = -1000
    for k, x in enumerate(seq + [c]):
        if k:
            if x.kind == 'mfma': t = max(t, pipe)
            if x.kind in ('mfma', 'valu'): t = max(t, vb)
        if k == len(seq): return t
        if x.kind == 'mfma' and credit:
            pipe = t + 4 * x.passes
            vb = t + (12 if x.op.startswith('v_smfmac') else 8)
        t += 4 * x.ncnt if x.ncnt else 4

def _issue(st, ins, out, credit_mfma=True):
    H = st.hist
    if ins.kind != 'salu' or ins.rd:
        while True:
            short = 0
            for k, p in enumerate(H):
                g = required_gap(p, ins)
                if g:
                    d = _dist(H[k:], ins, credit_mfma)
                    if d < 4 * (g + 1):
                        n = 1
                        while _dist(H[k:] + [I(f's_nop {n-1}')], ins, credit_mfma) < 4 * (g + 1): n += 1
                        short = max(short, n)
            if not short: break
            m = min(short, 16)
            nop = I(f's_nop {m-1}'); out.append(nop.text); H.append(nop); st.t += 4 * m
    out.append(ins.text)
    t = st.t
    if ins.kind == 'mfma': t = max(t, st.last_mfma_t + st.last_mfma_len)
    if ins.kind in ('mfma', 'valu'): t = max(t, st.valu_block)
    if ins.kind == 'mfma':
        st.last_mfma_t = t; st.last_mfma_len = 4 * ins.passes
        st.valu_block = t + (12 if ins.op.startswith('v_smfmac') else 8)
    st.t = t + (4 * ins.ncnt if ins.ncnt else 8 if ins.op.startswith(TRANS + ('v_permlane',)) else 4)
    H.append(ins)
    if len(H) > 24: del H[0]

def finalize(stream, st=None, credit_mfma=True):
    st = st or State(); out = []
    def emit_wait(nv, nl):
        parts = []
        if nv is not None: parts.append(f'vmcnt({nv})'); del st.vm[:len(st.vm) - nv]
        if nl is not None:
            parts.append(f'lgkmcnt({nl})'); del st.lg[:max(0, len(st.lg) - nl)]
            if nl == 0: st.sm = []
        if parts: _issue(st, I('s_waitcnt ' + ' '.join(parts)), out, credit_mfma)
    for it in stream.items:
        if isinstance(it, tuple):
            _, cls, tag = it
            q = st.vm if cls == 'vm' else st.lg
            if tag is None: idx = len(q) - 1
            else: idx = max([i for i, o in enumerate(q) if o.tag == tag], default=-1)
            if idx >= 0:
                n = len(q) - 1 - idx
                if cls == 'vm': emit_wait(min(n, 63), None)
                else: emit_wait(None, min(n, 15))
            continue
        ins = it
        if ins.kind == 'label':
            out.append(ins.text); continue
        if ins.op == 's_waitcnt':
            mv = re.search(r'vmcnt\((\d+)\)', ins.text); ml = re.search(r'lgkmcnt\((\d+)\)', ins.text)
            if mv and len(st.vm) > int(mv.group(1)): del st.vm[:len(st.vm) - int(mv.group(1))]
            if ml and len(st.lg) > int(ml.group(1)): del st.lg[:len(st.lg) - int(ml.group(1))]
            if ml and int(ml.group(1)) == 0: st.sm = []
            _issue(st, ins, out, credit_mfma); continue
        touched = set(ins.rd) | set(ins.wr)
        nv = nl = None
        iv = max([i for i, o in enumerate(st.vm) if touched & set(o.wr)], default=-1)
        if iv >= 0 and not (ins.kind == 'vmem' and not (set(ins.rd) & set(x for o in st.vm for x in o.wr))):
            nv = len(st.vm) - 1 - iv
        il = max([i for i, o in enumerate(st.lg) if touched & set(o.wr)], default=-1)
        if il >= 0 and not (ins.kind == 'lds' and not (set(ins.rd) & set(x for o in st.lg for x in o.wr))):
            nl = len(st.lg) - 1 - il
        if any(touched & set(o.wr) for o in st.sm): nl = 0
        if ins.kind == 'lds' and len(st.lg) >= 14: nl = min(nl if nl is not None else 99, 10)
        if ins.kind == 'vmem' and len(st.vm) >= 62: nv = min(nv if nv is not None else 99, 58)
        assert (nv is None or nv < 63) and (nl is None or nl < 15)
        emit_wait(nv, nl)
        _issue(st, ins, out, credit_mfma)
        if ins.kind == 'vmem':
            st.vm.append(ins)
        elif ins.kind == 'lds':
            st.lg.append(ins)
        elif ins.kind == 'smem':
            st.sm.append(ins)
    return out, st

def finalize_loop(stream, credit_mfma=True):
    _, st = finalize(stream, None, credit_mfma)
    out2, st2 = finalize(stream, st, credit_mfma)
    out3, _ = finalize(stream, st2, credit_mfma)
    assert out2 == out3, 'loop body did not reach a steady state'
    return out2
```

```python
import sys, math
from asmlib import header, descriptor
from sched import Stream, finalize
import chain3 as C
import gemm as G
import attn as AT
from chain3 import V, SRD, SP, f2u
from layout import *
NAME = 'concat_heads__grouped_kv_mqa__memory_aug_recurrent_mem_tr__prompt_kernel'
sWS, sDBG, sWv, sId, sSpin = 4, 8, 17, 16, 19
PT = 64
ptr = lambda nm: PT + KARG[nm] // 4

def entry(S, cfg):
    S(f'''
    s_cmp_ge_u32 s2, 256
    s_cbranch_scc1 L_end
    s_load_dwordx2 s[4:5], s[0:1], {KARG["ws"]}
    s_load_dwordx2 s[8:9], s[0:1], {KARG["dbg"]}
    s_getreg_b32 s3, hwreg(HW_REG_XCC_ID, 0, 4)
    v_lshrrev_b32 v1, 6, v0
    v_and_b32 v0, 63, v0
    v_readfirstlane_b32 s{sWv}, v1
    s_mov_b32 s6, 0x10000000
    s_mov_b32 s7, 0x20000
    s_mov_b32 s10, 256
    s_mov_b32 s11, 0x20000
    s_mov_b32 s{sSpin}, 0
    s_and_b32 s3, s3, 7
    s_lshl_b32 s29, s3, 2
    ''')
    if cfg.get('prof'): S('s_memrealtime s[100:101]')
    S(f'''
    s_waitcnt lgkmcnt(0)
    v_mov_b32 v4, {C.L_MISC}
    s_cmp_lg_u32 s{sWv}, 0
    s_cbranch_scc1 L_noticket
    v_mov_b32 v3, 1
    s_mov_b64 exec, 1
    buffer_atomic_add v3, off, s[8:11], s29 offset:{D_TICKET*4} sc0
    s_waitcnt vmcnt(0)
    ds_write_b32 v4, v3
    s_waitcnt lgkmcnt(0)
    s_mov_b64 exec, -1
    L_noticket:
    s_barrier
    ds_read_b32 v3, v4
    s_waitcnt lgkmcnt(0)
    v_readfirstlane_b32 s{sId}, v3
    s_barrier
    s_cmp_ge_u32 s{sId}, 32
    s_cbranch_scc1 L_end
    s_cmp_eq_u32 s3, 0
    s_cbranch_scc1 L_role0
    s_cmp_eq_u32 s3, 1
    s_cbranch_scc1 L_role1
    s_branch L_worker
    ''')

def prof(S, cfg, slot, vt=250):
    if not cfg.get('prof'): return
    S(f'''
    s_memrealtime s[98:99]
    s_lshl_b32 s97, s3, 5
    s_add_u32 s97, s97, s{sId}
    s_lshl_b32 s97, s97, 2
    s_add_u32 s97, s97, s{sWv}
    s_lshl_b32 s97, s97, 6
    s_add_u32 s97, s97, {0x6000000 + slot*4}
    s_waitcnt lgkmcnt(0)
    v_mov_b32 {V(vt)}, s98
    v_mov_b32 {V(vt+1)}, s100
    s_mov_b64 exec, 1
    buffer_store_dword {V(vt)}, off, {SRD(sWS)}, s97
    ''')
    if slot == 1: S(f's_sub_u32 s97, s97, 4\n buffer_store_dword {V(vt+1)}, off, {SRD(sWS)}, s97')
    S('s_mov_b64 exec, -1')

def chain_role(c, cfg):
    ccfg = dict(cfg.get('chain', {})); ccfg.update(flags=dict(kvq=D_KVQ, prog=D_PROG), fail='L_end', done=f'L_cdone{c}')
    plan = C.Plan(c, ccfg)
    S = Stream()
    S(f'L_role{c}:')
    C.prologue(S, plan, ccfg, KARG)
    prof(S, cfg, 1, 8)
    S(f'''
    s_barrier
    s_cmp_lg_u32 s{sWv}, 0
    s_cbranch_scc1 L_ready{c}
    v_mov_b32 v11, 1
    s_mov_b64 exec, 1
    buffer_atomic_add v11, off, s[8:11], 0 offset:{D_READY*4}
    s_mov_b64 exec, -1
    L_waitall{c}:
    buffer_load_dwordx3 v[8:10], off, s[8:11], 0 offset:{D_READY*4} sc1
    s_add_u32 s{sSpin}, s{sSpin}, 1
    s_cmp_gt_u32 s{sSpin}, 3000000
    s_cbranch_scc1 L_end
    s_waitcnt vmcnt(0)
    v_readfirstlane_b32 s{C.sT0}, v8
    v_readfirstlane_b32 s{C.sT1}, v9
    v_readfirstlane_b32 s70, v10
    s_and_b32 s70, s70, 0xffff
    s_cmp_lt_u32 s{C.sT0}, 64
    s_cbranch_scc1 L_waitall{c}
    s_cmp_eq_u32 s{C.sT1}, 0
    s_cbranch_scc1 L_waitall{c}
    s_cmp_lt_u32 s70, 32
    s_cbranch_scc1 L_waitall{c}
    v_mov_b32 v11, {C.L_MISC}
    ds_write_b32 v11, v9
    s_waitcnt lgkmcnt(0)
    L_ready{c}:
    s_barrier
    v_mov_b32 v11, {C.L_MISC}
    ds_read_b32 v9, v11
    s_mov_b32 s{sSpin}, 0
    ''')
    C.first_kv(S)
    S(f'v_readfirstlane_b32 s70, v9\n s_sub_u32 s70, s70, 1\n s_lshl_b32 s70, s70, 13')
    C.apply_near(S, plan, 70)
    prof(S, cfg, 2, 8)
    S(f'''
    s_waitcnt vmcnt(0)
    s_cmp_eq_u32 s{sWv}, 0
    s_cbranch_scc1 L_ch{c}_w0
    s_cmp_eq_u32 s{sWv}, 1
    s_cbranch_scc1 L_ch{c}_w1
    s_cmp_eq_u32 s{sWv}, 2
    s_cbranch_scc1 L_ch{c}_w2
    s_branch L_ch{c}_w3
    ''')
    lines = finalize(S)[0] + C.loops(plan, ccfg, f'L_ch{c}')
    E = Stream()
    E(f'L_cdone{c}:\n s_waitcnt vmcnt(0) lgkmcnt(0)')
    if c == 1:
        E(f'''
        s_barrier
        s_cmp_lg_u32 s{sWv}, 3
        s_cbranch_scc1 L_cexit{c}
        v_mov_b32 v8, 64
        s_mov_b64 exec, 1
        buffer_store_byte v8, off, {SRD(sDBG)}, s{sId} offset:{D_PROG*4} sc1
        s_mov_b64 exec, -1
        L_cexit{c}:
        ''')
    prof(E, cfg, 3, 8)
    E('s_waitcnt vmcnt(0)\n s_endpgm')
    return lines + finalize(E)[0]

def worker(cfg):
    sR, sRound, sType, sBlk, sCol, sLd = 47, 48, 49, 58, 59, 60
    S = Stream()
    S(f'''
    L_worker:
    s_load_dwordx16 s[{PT}:{PT+15}], s[0:1], 0
    s_load_dwordx8 s[{PT+16}:{PT+23}], s[0:1], 64
    s_load_dwordx2 s[{G.sO}:{G.sO+1}], s[0:1], {KARG["out"]}
    s_sub_u32 s{sR}, s3, 2
    s_mov_b32 s{G.sO+2}, {2048*2560}
    s_mov_b32 s{G.sO+3}, 0x20000
    s_mov_b32 s{G.sX+3}, 0x20000
    s_mov_b32 s{G.sW0+3}, 0x20000
    s_mov_b32 s{G.sW1+3}, 0x20000
    ''')
    S(f'''
    s_or_b32 s{G.sT0}, s{sR}, s{sId}
    s_or_b32 s{G.sT0}, s{G.sT0}, s{sWv}
    s_cmp_lg_u32 s{G.sT0}, 0
    s_cbranch_scc1 L_noprobe
    v_mov_b32 v8, 0
    s_mov_b64 exec, 1
    s_mov_b32 s50, -1
    s_mov_b32 s51, -1
    s_mov_b32 s52, 0
    s_mov_b32 s53, {C.WS_MB2R + 7168}
    s_mov_b32 s54, {C.WS_MB2R + 8192 + 7168}
    L_probe:
    s_waitcnt lgkmcnt(0)
    s_memtime s[56:57]
    s_waitcnt lgkmcnt(0)
    buffer_store_dword v8, off, {SRD(sWS)}, s53 sc1
    s_waitcnt vmcnt(0)
    s_memtime s[60:61]
    s_waitcnt lgkmcnt(0)
    buffer_store_dword v8, off, {SRD(sWS)}, s54 sc1
    s_waitcnt vmcnt(0)
    s_memtime s[62:63]
    s_waitcnt lgkmcnt(0)
    s_sub_u32 s56, s60, s56
    s_sub_u32 s57, s62, s60
    s_min_u32 s50, s50, s56
    s_min_u32 s51, s51, s57
    s_add_u32 s52, s52, 1
    s_cmp_lt_u32 s52, {cfg.get("nprobe", 4)}
    s_cbranch_scc1 L_probe
    s_cmp_le_u32 s50, s51
    s_cselect_b32 s50, 1, 2
    v_mov_b32 v8, s50
    buffer_store_dword v8, off, {SRD(sDBG)}, 0 offset:{D_NEAR*4} sc1
    s_mov_b64 exec, -1
    L_noprobe:
    s_waitcnt lgkmcnt(0)
    ''')
    G.setup_lane_consts(S)
    mv = lambda d, nm: f's_mov_b32 s{d}, s{ptr(nm)}\n s_mov_b32 s{d+1}, s{ptr(nm)+1}'
    S(f'''
    s_mov_b32 s{sRound}, 0
    L_task:
    s_lshl_b32 s50, s{sR}, 5
    s_add_u32 s50, s50, s{sId}
    s_cmp_eq_u32 s{sRound}, 0
    s_cbranch_scc0 L_r1
    s_cmp_eq_u32 s{sR}, 5
    s_cbranch_scc1 L_taskA
    s_mul_i32 s{sCol}, s50, 52429
    s_lshr_b32 s{sCol}, s{sCol}, 18
    s_mul_i32 s51, s{sCol}, 5
    s_sub_u32 s{sBlk}, s50, s51
    s_branch L_taskKV
    L_r1:
    s_cmp_eq_u32 s{sRound}, 1
    s_cbranch_scc0 L_r2
    s_cmp_ge_u32 s{sR}, 3
    s_cbranch_scc1 L_r1q
    s_mul_i32 s{sCol}, s50, 43691
    s_lshr_b32 s{sCol}, s{sCol}, 17
    s_mul_i32 s51, s{sCol}, 3
    s_sub_u32 s{sBlk}, s50, s51
    s_add_u32 s{sBlk}, s{sBlk}, 5
    s_branch L_taskKV
    L_r1q:
    s_sub_u32 s50, s50, 96
    s_branch L_taskQ
    L_r2:
    s_cmp_eq_u32 s{sRound}, 2
    s_cbranch_scc0 L_r3
    s_cmp_lt_u32 s{sR}, 4
    s_cbranch_scc1 L_doT5
    s_cmp_eq_u32 s{sR}, 4
    s_cbranch_scc1 L_doT2
    s_add_u32 s50, s{sId}, 96
    s_branch L_taskQ
    L_r3:
    s_cmp_eq_u32 s{sRound}, 3
    s_cbranch_scc0 L_doT3
    s_cmp_ge_u32 s{sId}, 24
    s_cbranch_scc1 L_doT3
    s_and_b32 s{sBlk}, s{sId}, 7
    s_lshr_b32 s{sCol}, s{sId}, 3
    s_lshl_b32 s51, s{sBlk}, 2
    ''')
    AT.poll(S, 'L_pt5', D_T5, f's_cmp_eq_u32 s{G.sT0}, 16', 'L_end', soff=51, sleep=16)
    S(f'''
    s_mov_b32 s{sType}, 4
    s_mov_b32 s{G.sX}, s{sWS}
    s_mov_b32 s{G.sX+1}, s{sWS+1}
    s_mov_b32 s{G.sX+2}, 0x10000000
    {mv(G.sW0, "Awo")}
    {mv(G.sW1, "Awo")}
    s_mov_b32 s{G.sXo}, {WS_OA}
    s_branch L_taskA2
    L_taskA:
    s_and_b32 s{sBlk}, s{sId}, 7
    s_lshr_b32 s{sCol}, s{sId}, 3
    {mv(G.sX, "Ax")}
    s_mov_b32 s{G.sX+2}, {2048*1280}
    s_mov_b32 s{G.sXo}, 0
    s_cmp_eq_u32 s{sCol}, 3
    s_cbranch_scc1 L_taskAKV
    s_mov_b32 s{sType}, 2
    {mv(G.sW0, "Awq")}
    {mv(G.sW1, "Awq")}
    L_taskA2:
    s_mov_b32 s{G.sW0+2}, {640*1280}
    s_mov_b32 s{G.sW1+2}, {640*1280}
    s_movk_i32 s{sLd}, 1280
    s_lshl_b32 s{G.sW0o}, s{sCol}, 9
    s_add_u32 s{G.sW1o}, s{G.sW0o}, 256
    s_branch L_gemm
    L_taskAKV:
    s_mov_b32 s{sType}, 3
    {mv(G.sW0, "Awk")}
    {mv(G.sW1, "Awv")}
    s_mov_b32 s{G.sW0+2}, {640*40}
    s_mov_b32 s{G.sW1+2}, {640*40}
    s_movk_i32 s{sLd}, 40
    s_mov_b32 s{G.sW0o}, 0
    s_mov_b32 s{G.sW1o}, 0
    s_branch L_gemm
    L_taskQ:
    s_mov_b32 s{sType}, 1
    s_and_b32 s{sBlk}, s50, 7
    s_lshr_b32 s{sCol}, s50, 3
    {mv(G.sW0, "Wq")}
    {mv(G.sW1, "Wq")}
    s_lshl_b32 s{G.sW0o}, s{sCol}, 9
    s_add_u32 s{G.sW1o}, s{G.sW0o}, 256
    s_branch L_taskB
    L_taskKV:
    s_mov_b32 s{sType}, 0
    {mv(G.sW0, "Wk")}
    {mv(G.sW1, "Wv")}
    s_lshl_b32 s{G.sW0o}, s{sCol}, 8
    s_mov_b32 s{G.sW1o}, s{G.sW0o}
    L_taskB:
    {mv(G.sX, "Bx")}
    s_mov_b32 s{G.sX+2}, {2048*1280}
    s_mov_b32 s{G.sXo}, 0
    s_mov_b32 s{G.sW0+2}, {640*8192}
    s_mov_b32 s{G.sW1+2}, {640*8192}
    s_movk_i32 s{sLd}, 8192
    L_gemm:
    s_mul_i32 s50, s{sBlk}, {256*1280}
    s_add_u32 s{G.sXo}, s{G.sXo}, s50
    ''')
    G.setup_task(S, sLd)
    S(f'''
    s_cmp_eq_u32 s{sType}, 0
    s_cbranch_scc1 L_coreTN
    s_cmp_eq_u32 s{sType}, 3
    s_cbranch_scc1 L_coreTN
    ''')
    lines = finalize(S)[0]
    lines += G.core('TT', 'L_gtt')
    E = Stream()
    seg = f's_lshl_b32 s53, s{sBlk}, 3\n s_lshl_b32 s54, s{sWv}, 1\n s_add_u32 s53, s53, s54'
    E(seg)
    E(f's_cmp_eq_u32 s{sType}, 1\n s_cbranch_scc0 L_epi_rows')
    E(f's_lshl_b32 s{G.sE0}, s53, 18\n s_lshl_b32 s54, s{sCol}, 14\n s_add_u32 s{G.sE0}, s{G.sE0}, s54\n s_add_u32 s{G.sE0}, s{G.sE0}, {WS_QX}')
    G.epi_frags(E, 'TT', 32*8192, 2048, 8192)
    E(f's_lshl_b32 s51, s{sBlk}, 2')
    AT.signal(E, D_KVQ, '0x10000', soff=51, uid='q')
    E('s_branch L_taskdone')
    E(f'L_epi_rows:\n s_cmp_eq_u32 s{sCol}, 2\n s_cselect_b32 s{G.sE2}, 1, 2\n s_lshl_b32 s54, s{sCol}, 9')
    E(f's_cmp_eq_u32 s{sType}, 2\n s_cbranch_scc0 L_epi_out')
    E(f's_mul_i32 s{G.sE0}, s53, {32*1280}\n s_add_u32 s{G.sE0}, s{G.sE0}, s54\n s_add_u32 s{G.sE0}, s{G.sE0}, {WS_QA}')
    E(f's_mov_b32 s{G.sE1}, {f2u(20**-0.5*math.log2(math.e))}')
    G.epi_rows(E, 1280, sWS, 'sc1', scale=G.sE1, nj_sreg=G.sE2, uid='q')
    AT.signal(E, D_APROJ, '1', uid='aq')
    E('s_branch L_taskdone')
    E(f'L_epi_out:\n s_mul_i32 s{G.sE0}, s53, {32*2560}\n s_add_u32 s{G.sE0}, s{G.sE0}, s54')
    G.epi_rows(E, 2560, G.sO, '', nj_sreg=G.sE2, uid='o')
    E('s_barrier\n s_branch L_taskdone')
    E('L_coreTN:')
    lines += finalize(E)[0]
    lines += G.core('TN', 'L_gtn')
    E = Stream()
    E(seg)
    E(f's_cmp_eq_u32 s{sType}, 0\n s_cbranch_scc0 L_epi_akv')
    E(f's_lshl_b32 s{G.sE0}, s53, 19\n s_lshl_b32 s54, s{sCol}, 14\n s_add_u32 s{G.sE0}, s{G.sE0}, s54\n s_add_u32 s{G.sE0}, s{G.sE0}, {WS_KVX}')
    G.epi_frags(E, 'TN', 32*16384, 4096, 2048)
    E(f's_lshl_b32 s51, s{sBlk}, 2')
    AT.signal(E, D_KVQ, '1', soff=51, uid='kv')
    E('s_branch L_taskdone')
    E(f'L_epi_akv:\n s_lshl_b32 s{G.sE0}, s53, 12\n s_add_u32 s{G.sE0}, s{G.sE0}, {WS_KVA}')
    G.epi_akv(E)
    AT.signal(E, D_APROJ, '1', uid='akv')
    E(f'L_taskdone:')
    if cfg.get('prof'):
        for r in range(4):
            E(f's_cmp_eq_u32 s{sRound}, {r}\n s_cbranch_scc0 L_pf{r}'); prof(E, cfg, 1 + r); E(f'L_pf{r}:')
    E(f's_add_u32 s{sRound}, s{sRound}, 1\n s_branch L_task')
    E('L_doT5:')
    AT.poll(E, 'L_pap', D_APROJ, f's_cmp_eq_u32 s{G.sT0}, 32', 'L_end', sleep=16)
    E(f's_lshl_b32 s55, s50, 4\n s_lshl_b32 s56, s{sWv}, 2\n s_add_u32 s55, s55, s56')
    lines += finalize(E)[0]
    lines += AT.t5(55)
    E = Stream()
    E(f's_lshr_b32 s51, s55, 8\n s_lshl_b32 s51, s51, 2')
    AT.signal(E, D_T5, '1', soff=51, uid='t5')
    prof(E, cfg, 5)
    E(f'''
    L_doT3:
    s_min_u32 s50, s{sR}, 4
    s_lshl_b32 s50, s50, 5
    s_add_u32 s50, s50, s{sId}
    s_mul_i32 s{sBlk}, s50, 52429
    s_lshr_b32 s{sBlk}, s{sBlk}, 20
    s_mul_i32 s51, s{sBlk}, 20
    s_sub_u32 s{sCol}, s50, s51
    {mv(G.sW0, "Wo")}
    s_mov_b32 s{G.sW0+2}, {4096*1280}
    s_mov_b32 s{sSpin}, 0
    ''')
    lines += finalize(E)[0]
    lines += AT.t3(sBlk, sCol, 'L_end')
    E = Stream()
    prof(E, cfg, 6)
    E(f's_waitcnt vmcnt(0)\n s_endpgm\n L_doT2:\n s_mov_b32 s{sSpin}, 0')
    lines += finalize(E)[0]
    lines += AT.t2(sId, 'L_end')
    E = Stream()
    prof(E, cfg, 6)
    E('s_waitcnt vmcnt(0)\n s_endpgm')
    return lines + finalize(E)[0]

BEST = dict(slwait=False, sr=1, d_g1=240, ackwait=2, pipe3=100)
def gen(cfg):
    cfg = dict(cfg); cfg.setdefault('chain', BEST)
    S = Stream(); entry(S, cfg)
    lines = finalize(S)[0] + ['L_end:', 's_endpgm']
    lines += worker(cfg) + chain_role(0, cfg) + chain_role(1, cfg)
    ref = open('concat_heads__grouped_kv_mqa__memory_aug_recurrent_mem_tr__prompt.s.ref').read().split('\n') if not cfg.get('nohdr') else []
    head = [l for l in ref if l.startswith(';') and '@launch' not in l][:16]
    txt = '\n'.join(head + ['; @launch grid=(256,1,1) block=(256,1,1) lds=163840']) + '\n' + header(NAME)
    txt += '\n'.join(l if l.endswith(':') else '    ' + l for l in lines) + '\n' + descriptor(NAME)
    return txt
if __name__ == '__main__':
    out = sys.argv[1] if len(sys.argv) > 1 else 'main.s'
    open(out, 'w').write(gen({}))
```

```python
import math
from sched import Stream, finalize, finalize_loop
from chain4 import V, SRD, SP, f2u
from gemm import A, sWS, sDBG, sX, sW0, sW1, sO, sWv, sId, sSpin, sT0, sT1, sT2, vLn
from layout import *

def poll(S, name, dword, cond, fail, vt=250, sleep=4, soff=None, srd=sDBG):
    S(f'''
    {name}:
    buffer_load_dword {V(vt+1)}, off, {SRD(srd)}, {('s%d' % soff) if soff is not None else 0} offset:{dword*4} sc1
    s_add_u32 s{sSpin}, s{sSpin}, 1
    s_cmp_gt_u32 s{sSpin}, 3000000
    s_cbranch_scc1 {fail}
    s_waitcnt vmcnt(0)
    v_readfirstlane_b32 s{sT0}, {V(vt+1)}
    {cond}
    s_cbranch_scc1 {name}_ok
    s_sleep {sleep}
    s_branch {name}
    {name}_ok:
    ''')

def signal(S, dword, val, vt=250, soff=None, barrier=True, uid='', srd=sDBG):
    S('s_waitcnt vmcnt(0)')
    if barrier:
        S(f's_barrier\n s_cmp_lg_u32 s{sWv}, 0\n s_cbranch_scc1 L_sig_{uid}')
    S(f'''
    v_mov_b32 {V(vt+1)}, {val}
    s_mov_b64 exec, 1
    buffer_atomic_add {V(vt+1)}, off, {SRD(srd)}, {('s%d' % soff) if soff is not None else 0} offset:{dword*4}
    s_mov_b64 exec, -1
    ''')
    if barrier: S(f'L_sig_{uid}:')

def t5(sTok, name='L_t5', first_trips=1, bound=2.0**30):
    sK, sCnt, sN1 = 50, 51, 52
    vL16, vQa = 1, 2
    Q = 8
    NEG = 40
    D = [104, 120, 136]
    Pp = [152, 160]
    KV = [168, 184, 200]
    MX = 216
    T = 220
    S = Stream()
    S(f'''
    v_lshlrev_b32 {V(vL16)}, 4, {V(vLn)}
    v_and_b32 {V(T)}, 31, {V(vLn)}
    v_mul_u32_u24 {V(vQa)}, 40, {V(T)}
    v_lshrrev_b32 {V(T)}, 5, {V(vLn)}
    v_cmp_eq_u32 vcc, 0, {V(T)}
    v_lshl_add_u32 {V(T+1)}, {V(T)}, 4, {V(vQa)}
    s_mul_i32 s{sT0}, s{sTok}, 1280
    s_add_u32 s{sT0}, s{sT0}, {WS_QA}
    s_mov_b32 s{sK}, {WS_KVA}
    ''')
    for t in range(4):
        S(f'buffer_load_dwordx4 {V(Q+8*t,4)}, {V(T+1)}, {SRD(sWS)}, s{sT0} offen offset:{t*1280} sc1')
        S(f'buffer_load_dwordx2 {V(Q+8*t+4,2)}, {V(vQa)}, {SRD(sWS)}, s{sT0} offen offset:{t*1280+32} sc1')
    def ldk(b, n, off): return [f'buffer_load_dwordx4 {V(KV[b]+4*j,4)}, {V(vL16)}, {SRD(sWS)}, s{sK} offen offset:{off+j*1024} sc1' for j in range(n)]
    for t in range(4):
        S(f'v_cndmask_b32 {V(Q+8*t+4)}, 0, {V(Q+8*t+4)}, vcc\n v_cndmask_b32 {V(Q+8*t+5)}, 0, {V(Q+8*t+5)}, vcc')
        S(f'v_mov_b32 {V(Q+8*t+6)}, 0\n v_mov_b32 {V(Q+8*t+7)}, 0')
    S(f's_mov_b32 s{sN1}, {first_trips}\n s_waitcnt vmcnt(0)\n {name}_again:\n s_mov_b32 s{sK}, {WS_KVA}')
    for o in ldk(0, 2, 0): S(o)
    S(f's_add_u32 s{sK}, s{sK}, 4096')
    for o in ldk(1, 2, 0): S(o)
    S(f's_add_u32 s{sK}, s{sK}, 4096')
    for t in range(4): S(f'v_mov_b32 {V(MX+t)}, 0xff800000')
    for r in range(16): S(f'v_mov_b32 {V(D[2]+r)}, 0xff800000')
    S(f's_mov_b32 s{sCnt}, 0\n s_waitcnt vmcnt(0)')
    lines = finalize(S)[0]
    L = Stream()
    mf = 'v_mfma_f32_32x32x16_bf16'
    n = 0
    for b in range(3):
        for t in range(4):
            d = D[n % 3]; pd = D[(n - 1) % 3]; pt = (t - 1) % 4; n += 1
            L(f'{mf} {V(d,16)}, {V(KV[b],4)}, {V(Q+8*t,4)}, 0')
            if t == 0:
                L(f's_min_u32 s{sK}, s{sK}, {WS_KVA + 63*4096}')
                for o in ldk((b + 2) % 3, 2, 0): L(o)
                L(f's_add_u32 s{sK}, s{sK}, 4096')
            ops = [f'v_max3_f32 {V(MX+pt)}, {V(MX+pt)}, {V(pd+2*r)}, {V(pd+2*r+1)}' for r in range(8)]
            L(f'{mf} {V(d,16)}, {V(KV[b]+4,4)}, {V(Q+8*t+4,4)}, {V(d,16)}')
            for o in ops: L(o)
    L(f's_add_u32 s{sCnt}, s{sCnt}, 1\n s_cmp_lt_u32 s{sCnt}, s{sN1}\n s_cbranch_scc1 {name}_p1')
    lines += ['.p2align 6', f'{name}_p1:'] + finalize_loop(L)
    S = Stream()
    S('s_nop 7\n s_nop 7')
    for r in range(8): S(f'v_max3_f32 {V(MX+3)}, {V(MX+3)}, {V(D[2]+2*r)}, {V(D[2]+2*r+1)}')
    S(f's_mov_b32 s{sK}, {WS_KVA}\n s_waitcnt vmcnt(0)')
    for o in ldk(0, 4, 0): S(o)
    S(f's_add_u32 s{sK}, s{sK}, 4096')
    for o in ldk(1, 4, 0): S(o)
    S(f's_add_u32 s{sK}, s{sK}, 4096')
    for t in range(4):
        S(f'v_mov_b32 {V(T)}, {V(MX+t)}')
        S(f'v_permlane32_swap_b32 {V(T)}, {V(MX+t)}')
        S(f'v_max_f32 {V(T)}, {V(T)}, {V(MX+t)}')
        for r in range(16): S(f'v_sub_f32 {V(NEG+16*t+r)}, 0, {V(T)}')
        for r in range(16): S(f'v_accvgpr_write_b32 {A(16*t+r)}, 0')
    for r in range(4): S(f'v_mov_b32 {V(Pp[1]+4+r)}, 0')
    for r in range(4): S(f'v_mov_b32 {V(KV[2]+12+r)}, 0')
    S(f'{mf} {V(D[0],16)}, {V(KV[0],4)}, {V(Q,4)}, {V(NEG,16)}')
    S(f'{mf} {V(D[0],16)}, {V(KV[0]+4,4)}, {V(Q+4,4)}, {V(D[0],16)}')
    S(f's_mov_b32 s{sCnt}, 0\n s_waitcnt vmcnt(0)\n s_nop 7\n s_nop 7')
    lines += finalize(S)[0]
    def unit(L, n, b, t, first_of_tile, last=False):
        d = D[n % 2]; nd = D[(n + 1) % 2]; p = Pp[n % 2]; pp = Pp[(n + 1) % 2]
        nb, nt = (b, t + 1) if t < 3 else ((b + 1) % 3, 0)
        pb, pt = (b, t - 1) if t > 0 else ((b - 1) % 3, 3)
        ex = lambda r: f'v_exp_f32 {V(d+r)}, {V(d+r)}'
        cv = lambda r: f'v_cvt_pk_bf16_f32 {V(p+r)}, {V(d+2*r)}, {V(d+2*r+1)}'
        L(ex(0))
        L(f'{mf} {A(16*pt,16)}, {V(KV[pb]+12,4)}, {V(pp+4,4)}, {A(16*pt,16)}')
        if first_of_tile:
            L(f's_min_u32 s{sK}, s{sK}, {WS_KVA + 63*4096}')
            for o in ldk((b + 2) % 3, 4, 0): L(o)
            L(f's_add_u32 s{sK}, s{sK}, 4096')
        for r in (1, 2, 3): L(ex(r))
        if not last: L(f'{mf} {V(nd,16)}, {V(KV[nb],4)}, {V(Q+8*nt,4)}, {V(NEG+16*nt,16)}')
        L(cv(0)); L(ex(4)); L(cv(1)); L(ex(5))
        if not last: L(f'{mf} {V(nd,16)}, {V(KV[nb]+4,4)}, {V(Q+8*nt+4,4)}, {V(nd,16)}')
        L(ex(6)); L(ex(7)); L(cv(2)); L(ex(8)); L(cv(3)); L(ex(9)); L(ex(10))
        L(f'{mf} {A(16*t,16)}, {V(KV[b]+8,4)}, {V(p,4)}, {A(16*t,16)}')
        L(ex(11)); L(cv(4)); L(ex(12)); L(cv(5)); L(ex(13)); L(ex(14)); L(ex(15)); L(cv(6)); L(cv(7))
    L = Stream(); n = 0
    for b in range(3):
        for t in range(4):
            unit(L, n, b, t, t == 0); n += 1
    L(f's_add_u32 s{sCnt}, s{sCnt}, 1\n s_cmp_lt_u32 s{sCnt}, 21\n s_cbranch_scc1 {name}_p2')
    lines += ['.p2align 6', f'{name}_p2:'] + finalize_loop(L)
    S = Stream()
    S('s_waitcnt vmcnt(0)\n s_nop 7')
    for t in range(4): unit(S, t, 0, t, False, last=(t == 3))
    S(f'{mf} {A(48,16)}, {V(KV[0]+12,4)}, {V(Pp[1]+4,4)}, {A(48,16)}')
    S(f's_mov_b32 s53, {f2u(bound)}')
    for t in range(4): S(f'v_accvgpr_read_b32 {V(T+t)}, {A(16*t+8)}')
    S(f'v_max3_f32 {V(T+4)}, {V(T)}, {V(T+1)}, {V(T+2)}\n v_add_f32 {V(T)}, {V(T)}, {V(T+1)}\n v_add_f32 {V(T+2)}, {V(T+2)}, {V(T+3)}')
    S(f'v_max_f32 {V(T+4)}, {V(T+4)}, {V(T+3)}\n v_add_f32 {V(T)}, {V(T)}, {V(T+2)}')
    S(f'v_cmp_ngt_f32 s[56:57], s53, {V(T+4)}\n v_cmp_u_f32 s[60:61], {V(T)}, {V(T)}\n s_or_b64 s[56:57], s[56:57], s[60:61]')
    S(f's_cbranch_scc0 {name}_fine\n s_cmp_eq_u32 s{sN1}, 22\n s_cbranch_scc1 {name}_fine\n s_mov_b32 s{sN1}, 22\n s_branch {name}_again\n {name}_fine:')
    S(f'''
    v_lshrrev_b32 {V(T)}, 5, {V(vLn)}
    v_lshl_add_u32 {V(T+1)}, {V(T)}, 3, {V(vQa)}
    v_mov_b32 {V(T+2)}, 0x7ffffff0
    v_cndmask_b32 {V(T+2)}, {V(T+2)}, {V(vQa)}, vcc
    s_mul_i32 s{sT0}, s{sTok}, 1280
    s_add_u32 s{sT0}, s{sT0}, {WS_OA}
    ''')
    for t in range(4):
        o = D[t % 2]
        for r in range(12): S(f'v_accvgpr_read_b32 {V(o+r)}, {A(16*t+r)}')
        S(f'v_mov_b32 {V(T+3)}, {V(o+8)}\n v_mov_b32 {V(T+4)}, {V(o+8)}')
        S(f'v_permlane32_swap_b32 {V(T+3)}, {V(T+4)}')
        S(f'v_rcp_f32 {V(T+4)}, {V(T+4)}')
        for r in range(12): S(f'v_mul_f32 {V(o+r)}, {V(o+r)}, {V(T+4)}')
        p = Pp[t % 2]
        for r in range(6): S(f'v_cvt_pk_bf16_f32 {V(p+r)}, {V(o+2*r)}, {V(o+2*r+1)}')
        S(f'buffer_store_dwordx2 {V(p,2)}, {V(T+1)}, {SRD(sWS)}, s{sT0} offen offset:{t*1280} sc1')
        S(f'buffer_store_dwordx2 {V(p+2,2)}, {V(T+1)}, {SRD(sWS)}, s{sT0} offen offset:{t*1280+16} sc1')
        S(f'buffer_store_dwordx2 {V(p+4,2)}, {V(T+2)}, {SRD(sWS)}, s{sT0} offen offset:{t*1280+32} sc1')
    lines += finalize(S)[0]
    return lines

def t2(sH, fail, name='L_t2', flags=True):
    sS, sQ, sKV, sKM, sOo, sC, sBig, sSh = 50, 51, 52, 53, 54, 55, 56, 57
    MK = 60
    vL16, vVM = 1, 2
    Qf, Kf, Vf, KM, VM = 8, 40, 72, 104, 120
    SS = 128
    PX, PM = 152, 160
    ONE, SUM = 168, 172
    O = 180
    T = 244
    S = Stream()
    S(f'''
    v_lshlrev_b32 {V(vL16)}, 4, {V(vLn)}
    v_bfe_u32 {V(T)}, {V(vLn)}, 1, 1
    v_xor_b32 {V(T)}, 1, {V(T)}
    v_mul_u32_u24 {V(T)}, 40, {V(T)}
    v_add_u32 {V(vVM)}, {V(vL16)}, {V(T)}
    v_bfe_u32 {V(T)}, {V(vLn)}, 2, 2
    v_lshrrev_b32 {V(T+1)}, 4, {V(vLn)}
    v_sub_u32 {V(T)}, {V(T)}, {V(T+1)}
    v_lshlrev_b32 {V(T)}, 3, {V(T)}
    v_and_b32 {V(T+1)}, 3, {V(vLn)}
    v_add_u32 {V(T)}, {V(T)}, {V(T+1)}
    ''')
    for c in range(-4, 8): S(f'v_cmp_le_i32 s[{MK+2*(c+4)}:{MK+2*(c+4)+1}], {c}, {V(T)}')
    for r in range(4): S(f'v_mov_b32 {V(ONE+r)}, 0x3f803f80')
    for tq in range(2): S(f'v_mov_b32 {V(PM+4*tq+1)}, 0\n v_mov_b32 {V(PM+4*tq+2)}, 0')
    S(f'''
    s_mov_b32 s{sC}, {f2u(128**-0.5 * math.log2(math.e))}
    v_mov_b32 {V(T+3)}, {f2u(-1e9 * 128**0.5)}
    s_mov_b32 s{sS}, s{sWv}
    s_and_b32 s{sSh}, s{sH}, 3
    s_lshl_b32 s{sSh}, s{sSh}, 3
    {name}:
    s_lshl_b32 s{sT1}, s{sS}, 5
    s_add_u32 s{sT1}, s{sT1}, s{sH}
    s_lshl_b32 s{sQ}, s{sT1}, 13
    s_add_u32 s{sQ}, s{sQ}, {WS_QX}
    s_lshl_b32 s{sKV}, s{sT1}, 14
    s_add_u32 s{sKV}, s{sKV}, {WS_KVX}
    s_lshl_b32 s{sKM}, s{sT1}, 12
    s_add_u32 s{sKM}, s{sKM}, {WS_KMVM}
    s_lshl_b32 s{sOo}, s{sS}, 18
    s_lshl_b32 s{sT1}, s{sH}, 12
    s_add_u32 s{sOo}, s{sOo}, s{sT1}
    s_add_u32 s{sOo}, s{sOo}, {WS_O}
    ''')
    if flags:
        S(f's_lshr_b32 s{sT2}, s{sS}, 3\n s_lshl_b32 s{sT2}, s{sT2}, 2')
        poll(S, f'{name}_pk', D_KVQ, f's_cmp_eq_u32 s{sT0}, 0x100020', fail, vt=T, soff=sT2, sleep=16)
    for w in range(4):
        if w == 2: S(f's_add_u32 s{sQ}, s{sQ}, 4096')
        for t in range(2): S(f'buffer_load_dwordx4 {V(Qf+8*w+4*t,4)}, {V(vL16)}, {SRD(sWS)}, s{sQ} offen offset:{(w&1)*2048+t*1024} sc1')
        for t in range(2): S(f'buffer_load_dwordx4 {V(Kf+8*w+4*t,4)}, {V(vL16)}, {SRD(sWS)}, s{sKV} offen offset:{t*1024} sc1')
        for t in range(2): S(f'buffer_load_dwordx4 {V(Vf+8*w+4*t,4)}, {V(vL16)}, {SRD(sWS)}, s{sKV} offen offset:{2048+t*1024} sc1')
        S(f's_add_u32 s{sKV}, s{sKV}, 4096')
    mf = 'v_mfma_f32_16x16x32_bf16'; mh = 'v_mfma_f32_16x16x16_bf16'
    sr = lambda tq, j: SS + 12*tq + 4*j
    for w in range(4):
        for tq in range(2):
            for tk in range(2):
                S(f'{mf} {V(sr(tq,tk),4)}, {V(Kf+8*w+4*tk,4)}, {V(Qf+8*w+4*tq,4)}, {"0" if w == 0 else V(sr(tq,tk),4)}')
    if flags:
        S(f's_lshl_b32 s{sT2}, s{sH}, 7\n s_add_u32 s{sT2}, s{sT2}, {WS_PROG}')
        poll(S, f'{name}_pc', 0, f's_cmp_gt_u32 s{sT0}, s{sS}', fail, vt=T, soff=sT2, sleep=6, srd=sWS)
    for w in range(4): S(f'buffer_load_dwordx4 {V(KM+4*w,4)}, {V(vL16)}, {SRD(sWS)}, s{sKM} offen offset:{w*1024} sc1')
    for w in range(4): S(f'buffer_load_dwordx2 {V(VM+2*w,2)}, {V(vVM)}, {SRD(sWS)}, s{sKM} offen offset:{w*1024} sc1')
    for tq in range(2):
        for tk in range(2):
            for r in range(4):
                c = 4*(tk - tq) + r
                S(f'v_cndmask_b32 {V(sr(tq,tk)+r)}, {V(T+3)}, {V(sr(tq,tk)+r)}, s[{MK+2*(c+4)}:{MK+2*(c+4)+1}]')
    for w in range(4):
        for tq in range(2):
            S(f'{mf} {V(sr(tq,2),4)}, {V(KM+4*w,4)}, {V(Qf+8*w+4*tq,4)}, {"0" if w == 0 else V(sr(tq,2),4)}')
    for tq in range(2):
        x = [sr(tq, 0) + i for i in range(10)]
        m, m2 = T, T + 1
        S(f'v_max3_f32 {V(m)}, {V(x[0])}, {V(x[1])}, {V(x[2])}')
        for i in (3, 5, 7): S(f'v_max3_f32 {V(m)}, {V(m)}, {V(x[i])}, {V(x[i+1])}')
        S(f'v_max_f32 {V(m2)}, {V(m)}, {V(x[9])}\n v_max_f32 {V(m)}, {V(m)}, {V(x[9])}')
        S(f'v_permlane16_swap_b32 {V(m)}, {V(m2)}')
        S(f'v_max_f32 {V(T+2)}, {V(m)}, {V(m2)}\n v_max_f32 {V(m)}, {V(m)}, {V(m2)}')
        S(f'v_permlane32_swap_b32 {V(m)}, {V(T+2)}')
        S(f'v_max_f32 {V(m)}, {V(m)}, {V(T+2)}\n v_mul_f32 {V(m)}, s{sC}, {V(m)}')
        for i in range(10): S(f'v_fma_f32 {V(x[i])}, {V(x[i])}, s{sC}, -{V(m)}')
        for i in range(10): S(f'v_exp_f32 {V(x[i])}, {V(x[i])}')
        for r in range(4): S(f'v_cvt_pk_bf16_f32 {V(PX+4*tq+r)}, {V(x[2*r])}, {V(x[2*r+1])}')
        S(f'v_cvt_pk_bf16_f32 {V(PM+4*tq)}, {V(x[8])}, {V(x[9])}\n v_cvt_pk_bf16_f32 {V(PM+4*tq+3)}, {V(x[8])}, {V(x[9])}')
    for tq in range(2): S(f'{mh} {V(SUM+4*tq,4)}, {V(ONE,2)}, {V(PM+4*tq,2)}, 0')
    orr = lambda tq, w, t: O + 32*tq + 8*w + 4*t
    for tq in range(2):
        for w in range(4):
            for t in range(2): S(f'{mh} {V(orr(tq,w,t),4)}, {V(VM+2*w,2)}, {V(PM+4*tq+2*t,2)}, 0')
    for tq in range(2): S(f'{mf} {V(SUM+4*tq,4)}, {V(ONE,4)}, {V(PX+4*tq,4)}, {V(SUM+4*tq,4)}')
    for tq in range(2):
        for w in range(4):
            for t in range(2): S(f'{mf} {V(orr(tq,w,t),4)}, {V(Vf+8*w+4*t,4)}, {V(PX+4*tq,4)}, {V(orr(tq,w,t),4)}')
    for tq in range(2): S(f'v_rcp_f32 {V(T+tq)}, {V(SUM+4*tq)}')
    for tq in range(2):
        if tq: S(f's_add_u32 s{sOo}, s{sOo}, 131072')
        for w in range(4):
            for i in range(8): S(f'v_mul_f32 {V(orr(tq,w,0)+i)}, {V(orr(tq,w,0)+i)}, {V(T+tq)}')
            d = SS + 4 * ((4*tq + w) % 6)
            for r in range(4): S(f'v_cvt_pk_bf16_f32 {V(d+r)}, {V(orr(tq,w,0)+r)}, {V(orr(tq,w,1)+r)}')
            S(f'buffer_store_dwordx4 {V(d,4)}, {V(vL16)}, {SRD(sWS)}, s{sOo} offen offset:{w*1024} sc1')
    if flags:
        S(f's_lshl_b32 s{sT2}, s{sS}, 7\n s_add_u32 s{sT2}, s{sT2}, {WS_T2}')
        signal(S, 0, '1', vt=T, soff=sT2, barrier=False, srd=sWS)
    S(f's_waitcnt vmcnt(0)\n s_add_u32 s{sS}, s{sS}, 4\n s_cmp_lt_u32 s{sS}, 64\n s_cbranch_scc1 {name}')
    return finalize(S)[0]

def t3(sG, sCg, fail, name='L_t3', flags=True, first=0, ng=6):
    sU, sB, sSh, sOo = 50, 51, 52, 53
    vL16, vA, vOut = 1, 2, 3
    B = 8
    D = 136
    E = 144
    T = 244
    S = Stream()
    S(f'''
    v_lshlrev_b32 {V(vL16)}, 4, {V(vLn)}
    v_lshrrev_b32 {V(T)}, 2, {V(vLn)}
    v_mul_u32_u24 {V(T)}, 1280, {V(T)}
    v_and_b32 {V(T+1)}, 3, {V(vLn)}
    v_lshl_add_u32 {V(T)}, {V(T+1)}, 4, {V(T)}
    v_lshrrev_b32 {V(T+2)}, 4, {V(vLn)}
    v_bfe_u32 {V(T+3)}, {V(vLn)}, 2, 2
    v_lshl_add_u32 {V(vA)}, {V(T+2)}, 3, {V(T+3)}
    v_lshlrev_b32 {V(vA)}, 6, {V(vA)}
    v_lshl_add_u32 {V(vA)}, {V(T+1)}, 4, {V(vA)}
    s_lshl_b32 s{sSh}, s{sWv}, 15
    v_add_u32 {V(vA)}, s{sSh}, {V(vA)}
    v_lshl_add_u32 {V(vOut)}, {V(T+3)}, 3, {V(T+1)}
    v_mul_u32_u24 {V(vOut)}, 2560, {V(vOut)}
    v_lshl_add_u32 {V(vOut)}, {V(T+2)}, 4, {V(vOut)}
    s_mul_i32 s{sB}, s{sWv}, {1024*1280}
    s_lshl_b32 s{sT1}, s{sCg}, 6
    s_add_u32 s{sB}, s{sB}, s{sT1}
    ''')
    for rnd in range(2):
        for i in range(32):
            S(f's_add_u32 m0, s{sSh}, {i*1024}\n s_add_u32 s{sB}, s{sB}, {0 if (rnd == 0 and i == 0) else 16*1280}')
            S(f'buffer_load_dwordx4 {V(T)}, {SRD(sW0)}, s{sB} offen lds', tag=f'w{rnd}_{i}')
        for ks in range(16):
            S.wait('vm', f'w{rnd}_{2*ks+1}')
            for t in range(2):
                for jj in range(2):
                    S(f'ds_read_b64_tr_b16 {A((16*rnd+ks)*8 + 4*t + 2*jj, 2)}, {V(vA)} offset:{ks*2048 + jj*256 + t*8}')
        S('s_waitcnt lgkmcnt(0)')
    S(f'''
    s_add_u32 s{sU}, s{sG}, {first}
    s_cmp_eq_u32 s{sG}, 0
    s_cselect_b32 s{sU}, 0, s{sU}
    s_lshl_b32 s{sT1}, s{sWv}, 11
    v_add_u32 {V(vA)}, s{sT1}, {V(vL16)}
    s_barrier
    {name}:
    s_lshl_b32 s{sB}, s{sU}, 17
    s_lshl_b32 s{sT1}, s{sWv}, 15
    s_add_u32 s{sB}, s{sB}, s{sT1}
    s_add_u32 s{sB}, s{sB}, {WS_O}
    ''')
    if flags:
        S(f'''
        s_cmp_lg_u32 s{sWv}, 0
        s_cbranch_scc1 {name}_go
        s_lshr_b32 s{sT1}, s{sU}, 1
        s_lshl_b32 s{sT2}, s{sT1}, 7
        s_add_u32 s{sT2}, s{sT2}, {WS_T2}
        ''')
        poll(S, f'{name}_p', 0, f's_cmp_eq_u32 s{sT0}, 32', fail, vt=T, soff=sT2, sleep=6, srd=sWS)
        S(f'{name}_go:')
    S('s_barrier')
    for ks in range(32):
        if ks and ks % 4 == 0: S(f's_add_u32 s{sB}, s{sB}, 4096')
        S(f'buffer_load_dwordx4 {V(B+4*ks,4)}, {V(vL16)}, {SRD(sWS)}, s{sB} offen offset:{(ks%4)*1024} sc1')
    mf = 'v_mfma_f32_16x16x32_bf16'
    for ks in range(32):
        for t in range(2):
            S(f'{mf} {V(D+4*t,4)}, {A(ks*8+4*t,4)}, {V(B+4*ks,4)}, {"0" if ks == 0 else V(D+4*t,4)}')
    S(f'ds_write_b128 {V(vA)}, {V(D,4)}\n ds_write_b128 {V(vA)}, {V(D+4,4)} offset:1024')
    S(f'''
    s_waitcnt lgkmcnt(0)
    s_barrier
    s_cmp_lg_u32 s{sWv}, 0
    s_cbranch_scc1 {name}_next
    ''')
    for j in range(6): S(f'ds_read_b128 {V(E+4*j,4)}, {V(vL16)} offset:{2048 + j*1024}')
    S(f'''
    s_lshr_b32 s{sT1}, s{sU}, 1
    s_lshl_b32 s{sT1}, s{sT1}, 5
    s_and_b32 s{sT2}, s{sU}, 1
    s_lshl_b32 s{sT2}, s{sT2}, 2
    s_add_u32 s{sT1}, s{sT1}, s{sT2}
    s_mul_i32 s{sOo}, s{sT1}, 2560
    s_lshl_b32 s{sT1}, s{sCg}, 6
    s_add_u32 s{sOo}, s{sOo}, s{sT1}
    ''')
    for j in range(3):
        for i in range(8): S(f'v_add_f32 {V(D+i)}, {V(D+i)}, {V(E+8*j+i)}')
    for r in range(4): S(f'v_cvt_pk_bf16_f32 {V(E+r)}, {V(D+2*r)}, {V(D+2*r+1)}')
    S(f'buffer_store_dwordx4 {V(E,4)}, {V(vOut)}, {SRD(sO)}, s{sOo} offen offset:1280')
    S(f'''
    s_waitcnt lgkmcnt(0)
    {name}_next:
    s_cmp_lt_u32 s{sU}, {first}
    s_cselect_b32 s{sT1}, 1, {ng}
    s_add_u32 s{sU}, s{sU}, s{sT1}
    s_cmp_lt_u32 s{sU}, 128
    s_cbranch_scc1 {name}
    s_waitcnt vmcnt(0)
    ''')
    return finalize(S)[0]
```

```python
import struct, math
from sched import Stream, finalize, finalize_loop, State, I

def f2u(x): return struct.unpack('<I', struct.pack('<f', x))[0]
def V(a, n=1): return f'v{a}' if n == 1 else f'v[{a}:{a+n-1}]'
def Rg(x, n=1):
    if x < 256:
        assert x + n <= 256
        return V(x, n)
    x -= 256
    return f'a{x}' if n == 1 else f'a[{x}:{x+n-1}]'

WS_MB1   = 0
WS_MB2L  = 0x50000
WS_MB2R  = 0x200000
WS_KMVM  = 0x420000
WS_KVX   = 0xD00000
WS_CHAIN_END = WS_KVX + 65*32*16384
L_MEM = 0; L_EX = 10240; L_MISC = 15360; L_W = 16384
PARTS = ([0, 1, 2], [3, 4])
vL16, vIDX, vZ, vCS, vWL, vH1S, vSL, vH1L = range(8)
T0, T1, T2, T3 = 8, 9, 10, 11
AB = [12, 16, 20, 24]
accQ, accK, accV, GB, GC = 28, 32, 36, 40, 44
P = [48, 56]
KX, VX = 64, 72
W0 = 80
sWS, sDBG, sW = 4, 8, 12
sH, sWv, sStep, sSpin, sC, sH1, sGA, sGB, sGC = range(16, 25)
sSLl, sSLr, sKV2, sProg = 25, 26, 27, 32
sKV, sKM, sT0, sT1, sForce = 30, 31, 33, 34, 35
mA, mSq, mSk, mR = 36, 38, 40, 42
sCmp, sC2, sLo, sRng, sFl = 44, 48, 47, 50, 51
sPa = [28, 29, 46, 73, 74, 75]
sStamp = 52
sTr = 79
SRD = lambda b: f's[{b}:{b+3}]'
SP = lambda b: f's[{b}:{b+1}]'

class Plan:
    def __init__(self, c, cfg=None):
        cfg = cfg or {}
        self.c = c
        own = PARTS[c]; rem = PARTS[1 - c]
        self.own, self.rem = own, rem
        self.korder = [4*a + j for a in own + rem for j in range(4)]
        nh = cfg.get('vdef', 4)
        seq = []
        for n, k in enumerate(self.korder):
            seq += [('Q', k), ('K', k)]
            if n < 20 - nh: seq.append(('V', k))
        self.nmain = len(seq)
        tail = list(range(max(16, 20 - nh), 20)) + list(range(20 - nh, 16))
        self.vtail = tail
        seq += [('V', self.korder[n]) for n in tail]
        self.seq = seq
        self.oo = [('O', a, w2) for a in own for w2 in range(4)]
        if c == 0:
            self.qslots = cfg.get('qslots0', {0: [0, 8, 16, 24, 32, 40, 48], 1: [1, 12, 20, 28, 36, 44, 52]})
            self.oslots = cfg.get('oslots0', {'P0': [0, 9], 'P1': [1], 'VX': [6]})
        else:
            self.qslots = cfg.get('qslots1', {0: [0, 8, 16, 24, 32, 40, 48], 1: [1, 12, 20, 28, 36, 44, 52]})
            self.oslots = cfg.get('oslots1', {'P0': [0], 'P1': [1], 'VX': [6]})
        self.l2 = []; self.lds = []
        for sl, L in self.qslots.items(): self.lds += [seq[x] for x in L]
        for sl, L in self.oslots.items(): self.lds += [self.oo[x] for x in L]
        self.w0 = W0 + (24 if c == 1 else 0)
        assert len(self.lds) == len(seq) + len(self.oo) - (512 - self.w0) // 8, len(self.lds)
        self.reg = {}
        r = self.w0
        for f in seq + self.oo:
            if f in self.lds: continue
            self.reg[f] = r; r += 8
        assert r == 512, r

def ld_lds(plan, f, slot):
    i = plan.lds.index(f)
    return [f'ds_read_b128 {V(slot+4*hh,4)}, {V(vWL)} offset:{i*2048+hh*1024}' for hh in range(2)]
def ld_frag(plan, f, slot):
    return ld_lds(plan, f, slot)
def ld_kv(which, slot):
    return [f'buffer_load_dwordx4 {V(slot+4*hh,4)}, {V(vL16)}, {SRD(sWS)}, s{sKV2 if which else sKV} offen offset:{which*2048+hh*1024} sc1' for hh in range(2)]
def smf(acc, a, b):
    return f'v_smfmac_f32_16x16x64_bf16 {V(acc,4)}, {V(a,4)}, {Rg(b,8)}, {V(vIDX)}'
def rdA(dst, k):
    return f'ds_read_b128 {V(dst,4)}, {V(vCS)} offset:{L_MEM + (k>>1)*1024 + (k&1)*32}'
def zero4(r):
    return [f'v_mov_b64 {V(r,2)}, 0', f'v_mov_b64 {V(r+2,2)}, 0']
def tagop(r, T):
    return f'v_or_b32 {V(r)}, 1, {V(r)}' if T else f'v_and_b32 {V(r)}, -2, {V(r)}'
def red3(d, a, b, c, T):
    return f'v_bitop3_b32 {V(d)}, {V(a)}, {V(b)}, {V(c)} bitop3:0x80' if T else f'v_or3_b32 {V(d)}, {V(a)}, {V(b)}, {V(c)}'
def red2(d, a, b, T):
    return f'v_and_b32 {V(d)}, {V(a)}, {V(b)}' if T else f'v_or_b32 {V(d)}, {V(a)}, {V(b)}'
def check_ops(regs, T, t, force=False):
    regs = list(regs); o = [red3(t, regs[0], regs[1], regs[2], T)]; regs = regs[3:]
    while len(regs) >= 2:
        o.append(red3(t, t, regs[0], regs[1], T)); regs = regs[2:]
    if regs and T and not force:
        o.append(f'v_bitop3_b32 {V(t)}, {V(t)}, {V(regs[0])}, 1 bitop3:0x80')
    else:
        if regs: o.append(red2(t, t, regs[0], T))
        o.append(f'v_and_or_b32 {V(t)}, {V(t)}, 1, s{sForce}' if force else f'v_and_b32 {V(t)}, 1, {V(t)}')
    o.append(f'v_cmp_ne_u32 vcc, {T}, {V(t)}')
    return o
SLEEP = [False]
def pause(S, cyc):
    if SLEEP[0] and cyc >= 64:
        S(f's_sleep {cyc // 64}'); cyc = cyc % 64
    n = cyc // 4
    while n > 0:
        m = min(n, 16); S(f's_nop {m-1}'); n -= m
def stamp(S, cfg, nm):
    L = cfg.get('stamps') or []
    if nm in L:
        i = L.index(nm); S(f'{"s_memrealtime" if cfg.get("rt") else "s_memtime"} s[{sStamp+2*i}:{sStamp+2*i+1}]')

def step(S, R, plan, w, T, cfg, uid):
    st = cfg.get('st', '')
    SLEEP[0] = cfg.get('sleep', False)
    c = plan.c
    Tin = 1 - T
    loc = dict(plan.reg)
    fail = cfg.get('fail', 'L_chain_fail')
    cf = lambda k, d: cfg.get(f'{k}{c}', cfg.get(k, d))
    fl = cfg.get('flags')
    km = c == 1 and not cfg.get('nokm')
    na = len(plan.own); red = w < na
    def spin(X, cnt):
        X(f's_add_u32 s{sSpin}, s{sSpin}, 1')
        if cfg.get('count'): X(f's_add_u32 s{87+cnt}, s{87+cnt}, 1')
        X(f's_cmp_gt_u32 s{sSpin}, {cfg.get("spin", 4000000)}\n s_cbranch_scc1 {fail}')
    def retry(name, cnt, loads, regs, TT, t, redo):
        X = Stream()
        X(f'{name}_r:'); spin(X, cnt)
        for o in loads: X(o)
        X('s_waitcnt vmcnt(0)')
        for o in check_ops(regs, TT, t): X(o)
        X(f's_cbranch_vccnz {name}_r')
        for o in redo: X(o)
        X(f's_nop 7\n s_waitcnt lgkmcnt(0)\n s_branch {name}')
        R.extend(finalize(X)[0])
    slotreg = {0: P[0], 1: P[1], 'P0': P[0], 'P1': P[1], 'VX': VX}
    base1 = plan.own[0] * 2048; base2 = plan.rem[0] * 2048
    L_O = L_MEM + (plan.korder[8] if (c == 1 or cf('stagex', False)) else plan.korder[12]) * 512
    nown = 4 * na
    def gather(reg, sreg, off):
        return (f'buffer_load_dwordx4 {V(reg,4)}, {V(vL16)}, {SRD(sWS)}, s{sreg} offen sc1',
                f'ds_write_b128 {V(vL16)}, {V(reg,4)} offset:{L_MEM + off}', list(range(reg, reg + 4)))
    RC = 96
    kmst = f'buffer_store_dwordx4 {V(RC,4)}, {V(vL16)}, {SRD(sWS)}, s{sKM} offen sc1'
    GA = AB[3]
    g1 = [gather(GA, sGA, base1 + w*1024)]; g2 = [gather(GB, sGB, base2 + w*1024)]; gx = []
    if w < 2:
        if c == 0: (gx if cf('stagex', False) else g1).append(gather(GC, sGC, base1 + 4096 + w*1024))
        else: g2.append(gather(GC, sGC, base2 + 4096 + w*1024))
    g2s = list(cf('g2s', []))
    g2x = []
    for j in range(len(g2s)):
        if c == 0: g2x.append([gather(VX + 4*j, sGB, base2 + w*1024)])
        else: g2x.append([gather(80 + 8*j, sGB, base2 + w*1024)] + ([gather(84 + 8*j, sGC, base2 + 4096 + w*1024)] if w < 2 else []))
    stamp(S, cfg, 'start')
    seq = plan.seq; ko = plan.korder
    kpos = {k: n for n, k in enumerate(ko)}
    nxt = {}; lastslot = {}
    for sl, L in plan.qslots.items():
        for a, b in zip(L, L[1:] + [None]):
            loc[seq[a]] = slotreg[sl]
            if b is not None: nxt[a] = (seq[b], slotreg[sl])
            else: lastslot[sl] = a
    onxt = {}
    for sl, L in plan.oslots.items():
        for a, b in zip(L, L[1:] + [None]):
            loc[plan.oo[a]] = slotreg[sl]
            if b is not None: onxt[a] = (plan.oo[b], slotreg[sl])
    PF = cf('apf', 2)
    for n in range(PF): S(rdA(AB[n], ko[n]))
    lastuse = {}; firstuse = {}
    for i, f in enumerate(seq[:plan.nmain]):
        lastuse[kpos[f[1]]] = i; firstuse.setdefault(kpos[f[1]], i)
    rer = [n for n in plan.vtail if n < 16]
    vbuf = {n: AB[n % 4] for n in plan.vtail if n >= 16}
    for j, n in enumerate(rer): vbuf[n] = P[j >> 1] + 4 * (j & 1)
    stages = []
    if c == 0 and cf('stagex', False): stages.append((gx, 8, cf('chkx_at', 8), cf('barx_at', 17), 'x'))
    stages.append((g2, nown, cf('chk2_at', [26, 13][c]), cf('bar2_at', [33, 21][c]), '2'))
    vq = []; lq = []; mq = []
    nextA = PF
    acc = {'Q': accQ, 'K': accK, 'V': accV}
    SEL = GB
    for i, f in enumerate(seq[:plan.nmain]):
        for sl in (0, 1):
            if i == lastslot[sl] + 1:
                lq += [(rdA(vbuf[n], ko[n]), None) for n in rer[2*sl:2*sl+2]]
        for (gs, kneed, ca, ba, nm) in stages:
            if i == ca and gs:
                vq += check_ops([x for g in gs for x in g[2]], Tin, T0, force=(Tin == 1)) + ['s_nop 0', 'BR' + nm]
                lq = [(g[1], 'gw' + nm) for g in gs] + lq
                stamp(S, cfg, 'chk' + nm)
            if i == ba:
                assert 'BR' + nm not in vq and not any(t == 'gw' + nm for _, t in lq)
                S.wait('lg', 'gw' + nm); S('s_barrier'); stamp(S, cfg, 'bar' + nm)
                if nm == '2':
                    vq += [f'v_cndmask_b32 {V(SEL)}, 0, {V(vZ)}, {SP(mSq)}', f'v_cndmask_b32 {V(SEL+1)}, 0, {V(vZ)}, {SP(mSk)}']
                    S(f's_mov_b64 vcc, {SP(mA)}')
                    if Tin == 1: S(f's_mov_b32 s{sForce}, 0')
        S(smf(acc[f[0]], AB[kpos[f[1]] % 4], loc[f]))
        stamp(S, cfg, f'q{i}')
        if i in nxt and not cfg.get('abl_lds'):
            nf, sl = nxt[i]; lq += [(o, None) for o in ld_lds(plan, nf, sl)]
        avail = all(nextA < kneed or i >= ba for (gs, kneed, ca, ba, nm) in stages)
        canA = nextA < 20 and avail and (nextA < 4 or lastuse[nextA - 4] <= i) and firstuse[nextA] - i <= 3 * PF + 1
        if canA:
            S(rdA(AB[nextA % 4], ko[nextA])); nextA += 1
        elif lq:
            o, t = lq.pop(0); S(o, tag=t)
        if cf('lq2', False) and lq and lq[0][1] is None and (canA or len(lq) & 1):
            o, t = lq.pop(0); S(o, tag=t)
        if i in g2s:
            if Tin == 1: S(f's_cmp_lg_u32 s{sForce}, 0\n s_cbranch_scc1 L_g2s{i}_{uid}')
            for g in g2x[g2s.index(i)]: S(g[0])
            if Tin == 1: S(f'L_g2s{i}_{uid}:')
        if mq and (i & 1): S(*mq.pop(0))
        if vq:
            o = vq.pop(0)
            if o.startswith('BR'):
                gs = [s_ for s_ in stages if s_[4] == o[2:]][0][0]
                nm = f'L_c{o[2:]}_{uid}'
                while any(t == 'gw' + o[2:] for _, t in lq):
                    o2, t2 = lq.pop(0); S(o2, tag=t2)
                S(f's_cbranch_vccnz {nm}_r' if not cfg.get('solo') else f's_cbranch_vccnz {nm}'); S(f'{nm}:')
                if o == 'BR2' and g2s:
                    assert max(g2s) < i
                    Y = Stream(); Y(f'{nm}_r:')
                    for j, gg in enumerate(g2x):
                        if cfg.get('count'): Y('s_add_u32 s89, s89, 1')
                        Y(f's_waitcnt vmcnt({len(gs) * (len(g2x) - 1 - j)})')
                        for o3 in check_ops([x for g in gg for x in g[2]], Tin, T0): Y(o3)
                        Y(f's_cbranch_vccnz {nm}_n{j}')
                        for g in gg: Y(g[1])
                        Y(f's_waitcnt lgkmcnt(0)\n s_branch {nm}\n {nm}_n{j}:')
                    Y(f's_branch {nm}q_r')
                    R.extend(finalize(Y)[0])
                    retry(nm + 'q', 2, [g[0] for g in gs], [x for g in gs for x in g[2]], Tin, T0, [g[1] for g in gs])
                    R.append(f'{nm}q:'); R.append(f's_branch {nm}')
                else:
                    retry(nm, 2 if o == 'BR2' else 3, [g[0] for g in gs], [x for g in gs for x in g[2]], Tin, T0, [g[1] for g in gs])
                if o == 'BR2':
                    if km:
                        mq.append((kmst + f'\n s_add_u32 s{sKM}, s{sKM}, {32*4096}', 'km'))
                        if fl and w == 3:
                            mq.append((f's_sub_u32 s{sT0}, s{sStep}, 1\n s_max_i32 s{sT0}, s{sT0}, 0\n v_mov_b32 {V(vH1L)}, s{sT0}\n s_mov_b64 exec, 1\n buffer_store_dword {V(vH1L)}, off, {SRD(sWS)}, s{sProg} sc1\n s_mov_b64 exec, -1', None))
                    mq += [(o_, None) for o_ in ld_kv(1, VX)]
            else: S(o)
    assert not vq and not mq
    for o, t in lq: S(o, tag=t)
    stamp(S, cfg, 'qkend')
    vt = list(plan.vtail)
    def vs(n, side=()):
        side = list(side)
        for _ in range(n):
            if vt:
                p = vt.pop(0); S(smf(accV, vbuf[p], loc[('V', ko[p])]))
                if side: S(side.pop(0))
        for o in side: S(o)
    nv = cf('nv', [2, 1, 1, 9])
    vs(nv[0])
    PK = GC; X = GC; D1, D2 = accQ, accK; S1, S2, S0 = accQ, accK, AB[0]
    S(f'v_cvt_pk_bf16_f32 {V(PK)}, {V(accQ)}, {V(accQ+1)}')
    S(f'v_cvt_pk_bf16_f32 {V(PK+1)}, {V(accK)}, {V(accK+1)}')
    S(f'v_cvt_pk_bf16_f32 {V(PK+2)}, {V(accQ+2)}, {V(accQ+3)}')
    S(f'v_cvt_pk_bf16_f32 {V(PK+3)}, {V(accK+2)}, {V(accK+3)}')
    S(f'v_mfma_f32_16x16x16_bf16 {V(D1,4)}, {V(PK,2)}, {V(SEL,2)}, 0')
    S(f'v_mfma_f32_16x16x16_bf16 {V(D2,4)}, {V(PK+2,2)}, {V(SEL,2)}, 0')
    stamp(S, cfg, 'tr')
    VM = GB + 2
    vs(nv[1])
    for r in range(4): S(f'v_cvt_pk_bf16_f32 {V(X+r)}, {V(D1+r)}, {V(D2+r)}')
    S(f'v_mfma_f32_16x16x32_bf16 {V(S2,4)}, {V(KX+4,4)}, {V(X,4)}, 0')
    S(f'v_mfma_f32_16x16x32_bf16 {V(S1,4)}, {V(KX,4)}, {V(X,4)}, 0')
    assert all(vbuf[p] != AB[0] for p in vt)
    S(f'v_mfma_f32_16x16x32_bf16 {V(S0,4)}, {V(X,4)}, {V(X,4)}, 0')
    stamp(S, cfg, 'sc')
    vs(nv[2])
    db = 'quad_perm:[0,1,0,1] row_mask:0xf bank_mask:0xf'
    dq = 'quad_perm:[2,3,2,3] row_mask:0xf bank_mask:0xf'
    dx = 'quad_perm:[2,3,0,1] row_mask:0xf bank_mask:0xf'
    for r in range(4): S(f'v_cndmask_b32_dpp {V(S1+r)}, {V(S2+r)}, {V(S1+r)}, vcc {dq}')
    S(f'ds_write_b128 {V(vL16)}, {V(S1,4)} offset:{L_EX + w*1024}', tag='xw')
    S(f'v_cndmask_b32_dpp {V(T3)}, {V(S0+1)}, {V(S0)}, vcc {dq}')
    S(f'ds_write_b32 {V(vL16)}, {V(T3)} offset:{L_EX + 4096 + 4*w}', tag='xw')
    stamp(S, cfg, 'xw')
    flagld = f'buffer_load_dword {V(vSL)}, off, {SRD(sDBG)}, s{sFl} sc1' if (fl and w == 3) else None
    vs(nv[3], ld_kv(0, KX) + ([flagld] if flagld else []))
    assert not vt
    S.wait('lg', 'xw'); S('s_barrier')
    stamp(S, cfg, 'barb')
    E = [accQ, accK, AB[1], AB[2]]; E4 = AB[3]
    PX = accK; PM = AB[0]; X4 = GB
    S(f'ds_read_b128 {V(E4,4)}, {V(vL16)} offset:{L_EX + 4096}')
    for j in range(4): S(f'ds_read_b128 {V(E[j],4)}, {V(vL16)} offset:{L_EX + j*1024}')
    S(f'v_cvt_pk_bf16_f32 {V(VM)}, {V(accV)}, {V(accV+1)}')
    S(f'v_cvt_pk_bf16_f32 {V(VM+1)}, {V(accV+2)}, {V(accV+3)}')
    S(f'v_mov_b32 {V(PM+1)}, 0\n v_mov_b32 {V(PM+2)}, 0')
    if T == 1:
        S(f's_cmp_ge_u32 s{sStep}, {cfg.get("steps", 64) - 1}')
        S(f's_cbranch_scc1 {cfg.get("done", "L_chain_done")}')
    stamp(S, cfg, 'erd')
    x = [E[0], E[0]+1, E[0]+2, E[0]+3, X4]
    y = [AB[1], AB[1]+1, AB[1]+2, AB[1]+3, T3]
    S(f'v_pk_add_f32 {V(E4,2)}, {V(E4,2)}, {V(E4+2,2)}')
    S(f'v_add_f32 {V(E4)}, {V(E4)}, {V(E4+1)}')
    S(f'v_mul_f32 {V(X4)}, s{sC}, {V(E4)}')
    for r in (0, 2): S(f'v_pk_mul_f32 {V(E[0]+r,2)}, {V(E[0]+r,2)}, s[{sC2}:{sC2+1}]')
    S(f'v_exp_f32 {V(y[4])}, {V(x[4])}')
    for j in range(1, 4):
        for r in (0, 2): S(f'v_pk_fma_f32 {V(E[0]+r,2)}, {V(E[j]+r,2)}, s[{sC2}:{sC2+1}], {V(E[0]+r,2)}')
    stamp(S, cfg, 'sum')
    O0, O1 = AB[2], AB[3]
    pre = [o for sl in (0, 1) for o in ld_lds(plan, plan.oo[plan.oslots[f'P{sl}'][0]], P[sl])] if cf('prepv', True) else []
    def softpv(Z, pre=()):
        pre = list(pre)
        def pr():
            if pre: Z(pre.pop(0))
        Z(f'v_mov_b32_dpp {V(T1)}, {V(y[4])} {db}')
        for j in (0, 1): Z(f'v_exp_f32 {V(y[j])}, {V(x[j])}')
        Z(f'v_cvt_pk_bf16_f32 {V(PM)}, {V(y[4])}, {V(T1)}')
        Z(f'v_cvt_pk_bf16_f32 {V(PM+3)}, {V(y[4])}, {V(T1)}')
        Z(f'v_cvt_pk_bf16_f32 {V(PX)}, {V(y[0])}, {V(y[1])}')
        Z(f'v_exp_f32 {V(y[2])}, {V(x[2])}')
        Z(f'v_mfma_f32_16x16x16_bf16 {V(O0,4)}, {V(VM,2)}, {V(PM,2)}, 0'); pr()
        Z(f'v_exp_f32 {V(y[3])}, {V(x[3])}')
        Z(f'v_mov_b32_dpp {V(PX+2)}, {V(PX)} {db}')
        Z(f'v_cvt_pk_bf16_f32 {V(PX+1)}, {V(y[2])}, {V(y[3])}')
        Z(f'v_mfma_f32_16x16x16_bf16 {V(O1,4)}, {V(VM,2)}, {V(PM+2,2)}, 0'); pr()
        Z(f'v_add_f32 {V(T0)}, {V(y[0])}, {V(y[1])}')
        Z(f'v_mov_b32_dpp {V(PX+3)}, {V(PX+1)} {db}')
        Z(f'v_add_f32 {V(T2)}, {V(y[2])}, {V(y[3])}')
        Z(f'v_add_f32 {V(T0)}, {V(T0)}, {V(y[4])}')
        Z(f'v_mfma_f32_16x16x32_bf16 {V(O0,4)}, {V(VX,4)}, {V(PX,4)}, {V(O0,4)}'); pr()
        Z(f'v_add_f32 {V(T0)}, {V(T0)}, {V(T2)}')
        Z(f'v_mfma_f32_16x16x32_bf16 {V(O1,4)}, {V(VX+4,4)}, {V(PX,4)}, {V(O1,4)}'); pr()
        Z(f'v_add_f32_dpp {V(T1)}, {V(T0)}, {V(T0)} {dx}')
        Z(f'v_add_f32_dpp {V(T2)}, {V(T0)}, {V(T0)} {dx}')
        Z(f'v_permlane16_swap_b32 {V(T1)}, {V(T2)}')
        Z(f'v_add_f32 {V(T0)}, {V(T1)}, {V(T2)}')
        Z(f'v_add_f32 {V(T1)}, {V(T1)}, {V(T2)}')
        Z(f'v_permlane32_swap_b32 {V(T0)}, {V(T1)}')
        Z(f'v_add_f32 {V(T0)}, {V(T0)}, {V(T1)}')
        Z(f'v_rcp_f32 {V(T2)}, {V(T0)}')
    softpv(S, pre)
    stamp(S, cfg, 'pvend')
    nm = f'L_sm_{uid}'
    OP = accK
    def scale(Z):
        for r in (0, 2): Z(f'v_pk_mul_f32 {V(O0+r,2)}, {V(O0+r,2)}, {V(T2,2)} op_sel_hi:[1,0]')
        for r in (0, 2): Z(f'v_pk_mul_f32 {V(O1+r,2)}, {V(O1+r,2)}, {V(T2,2)} op_sel_hi:[1,0]')
        for r in range(4): Z(f'v_cvt_pk_bf16_f32 {V(OP+r)}, {V(O0+r)}, {V(O1+r)}')
    S(f'v_subrev_u32 {V(T0)}, s{sLo}, {V(T0)}')
    S(f'v_cmp_le_u32 s[{sCmp}:{sCmp+1}], s{sRng}, {V(T0)}')
    scale(S)
    S(f's_cmp_lg_u64 s[{sCmp}:{sCmp+1}], 0\n s_cbranch_scc1 {nm}_r\n {nm}:')
    X2 = Stream()
    X2(f'{nm}_r:')
    X2(f'v_max3_f32 {V(T0)}, {V(x[0])}, {V(x[1])}, {V(x[2])}')
    X2(f'v_max3_f32 {V(T0)}, {V(T0)}, {V(x[3])}, {V(x[4])}')
    X2(f'v_max_f32_dpp {V(T1)}, {V(T0)}, {V(T0)} {dx}\n v_max_f32_dpp {V(T2)}, {V(T0)}, {V(T0)} {dx}')
    X2(f'v_permlane16_swap_b32 {V(T1)}, {V(T2)}')
    X2(f'v_max_f32 {V(T0)}, {V(T1)}, {V(T2)}\n v_max_f32 {V(T3)}, {V(T1)}, {V(T2)}')
    X2(f'v_permlane32_swap_b32 {V(T0)}, {V(T3)}\n v_max_f32 {V(T0)}, {V(T0)}, {V(T3)}')
    for j in range(5): X2(f'v_sub_f32 {V(x[j])}, {V(x[j])}, {V(T0)}')
    X2(f'v_exp_f32 {V(y[4])}, {V(x[4])}')
    softpv(X2); scale(X2); X2(f's_branch {nm}')
    R.extend(finalize(X2)[0])
    stamp(S, cfg, 'ocvt')
    S(f's_mov_b64 exec, {SP(mA)}')
    S(f'ds_write_b128 {V(vCS)}, {V(OP,4)} offset:{L_O + (w>>1)*1024 + (w&1)*32}', tag='ow')
    S('s_mov_b64 exec, -1')
    WA = AB; WC = [accV, GB, GC] if c == 0 else [accV, accQ]
    if not cf('prepv', True):
        for sl in (0, 1):
            for o in ld_lds(plan, plan.oo[plan.oslots[f'P{sl}'][0]], P[sl]): S(o)
    for a in range(na if cf('prepv', True) else 1):
        for o in zero4(WC[a]): S(o)
    stamp(S, cfg, 'ow0'); S.wait('lg', 'ow'); S('s_barrier')
    stamp(S, cfg, 'barc')
    for j in range(4): S(f'ds_read_b128 {V(WA[j],4)}, {V(vCS)} offset:{L_O + (j>>1)*1024 + (j&1)*32}')
    for a in range(1, 1 if cf('prepv', True) else na):
        for o in zero4(WC[a]): S(o)
    oo = plan.oo
    lq = list(ld_frag(plan, plan.oo[plan.oslots['VX'][0]], VX)); vq = []
    def pack(n):
        o = []
        for hf in range(2):
            d = WC[n] + hf
            o += [(f'v_cvt_pk_bf16_f32 {V(d)}, {V(WC[n]+2*hf)}, {V(WC[n]+2*hf+1)}', None), (tagop(d, T), None),
                  (f'buffer_store_dword {V(d)}, {V(vH1S)}, {SRD(sWS)}, s{sPa[2*n+hf]} offen {st}', f'h1s{n}')]
        return o
    for i, f in enumerate(oo):
        n, w2 = i >> 2, f[2]
        S(smf(WC[n], WA[w2], loc[f]))
        stamp(S, cfg, f'wo{i}')
        if i in onxt:
            nf, sl = onxt[i]; lq += ld_lds(plan, nf, sl)
        if lq: S(lq.pop(0))
        if w2 == 1 and n > 0: vq += pack(n - 1)
        if cf('stlate', True):
            if vq and 'store' in vq[0][0]: S(*vq.pop(0))
            if vq: S(*vq.pop(0))
        else:
            if vq: S(*vq.pop(0))
            if vq and 'store' in vq[0][0]: S(*vq.pop(0))
    for o in vq: S(*o)
    pl = pack(na - 1)
    for k in (0, 3, 1, 4, 2, 5): S(*pl[k])
    stamp(S, cfg, 'woend')
    for j in range(2):
        for o in ld_frag(plan, seq[j], P[j]): S(o)
    def record(Z):
        Z(f'v_mov_b32_dpp {V(T1)}, {V(VM)} {db}')
        Z(f'v_mov_b32_dpp {V(T2)}, {V(VM+1)} {db}')
        Z(f'v_cndmask_b32 {V(RC)}, {V(X)}, {V(VM)}, vcc')
        Z(f'v_cndmask_b32 {V(RC+1)}, {V(X+1)}, {V(VM+1)}, vcc')
        Z(f'v_cndmask_b32 {V(RC+2)}, {V(X+2)}, {V(T1)}, vcc')
        Z(f'v_cndmask_b32 {V(RC+3)}, {V(X+3)}, {V(T2)}, vcc')
    cfg['_record'] = (record, kmst)
    if km: record(S)
    def updates():
        S(f's_add_u32 s{sSLr}, s{sSLr}, 32768\n s_add_u32 s{sGB}, s{sGB}, 32768')
        if c == 1: S(f's_add_u32 s{sGC}, s{sGC}, 32768')
        if not cfg.get('samekv'):
            S(f's_add_u32 s{sKV}, s{sKV}, {32*16384}\n s_add_u32 s{sKV2}, s{sKV2}, {32*16384}')
    if red:
        RS = AB[2]; L = AB[0]; DD = accK
        for r in range(4): S(f'v_cndmask_b32 {V(RS+r)}, 0, {V(vZ)}, {SP(mR)}')
        hl = [f'buffer_load_dword {V(L+j)}, {V(vH1L)}, {SRD(sWS)}, s{sH1} offen offset:{j*256} sc1' for j in range(8)]
        aw = cf('ackwait', 2)
        if aw is not None: S.wait('vm', f'h1s{min(w + aw, na - 1)}')
        pause(S, cf('d_h1', [0, 0, 0])[w])
        stamp(S, cfg, 'ack')
        for o in hl: S(o)
        for r in (accV, accQ):
            for o in zero4(r): S(o)
        updates()
        nm = f'L_c1_{uid}'
        def mmf(LL): return [f'v_mfma_f32_16x16x32_bf16 {V(DD,4)}, {V(LL,4)}, {V(RS,4)}, 0', f'v_mfma_f32_16x16x32_bf16 {V(DD,4)}, {V(LL+4,4)}, {V(RS,4)}, {V(DD,4)}']
        mm = mmf(L)
        p1 = cf('pipe1', None)
        L2 = GB
        hl2 = [o.replace(f'{V(L+j)},', f'{V(L2+j)},', 1) for j, o in enumerate(hl)]
        if p1 is not None:
            pause(S, p1)
            for o in hl2: S(o)
        ck = check_ops(range(L, L+8), T, T0)
        stamp(S, cfg, 'h1w'); S(mm[0]); stamp(S, cfg, 'h1a'); S(ck[0]); S(mm[1]); stamp(S, cfg, 'h1b')
        for o in ck[1:]: S(o)
        pk = [f'v_cvt_pk_bf16_f32 {V(T2)}, {V(DD)}, {V(DD+1)}', f'v_cvt_pk_bf16_f32 {V(T3)}, {V(DD+2)}, {V(DD+3)}', tagop(T2, T), tagop(T3, T)]
        for o in pk: S(o)
        S(f's_cbranch_vccnz {nm}_r'); S(f'{nm}:')
        if p1 is None:
            retry(nm, 1, hl, range(L, L+8), T, T0, mm + pk)
        else:
            Y = Stream()
            for (lab, other, ld, LL) in ((f'{nm}_r', f'{nm}_r2', hl, L2), (f'{nm}_r2', f'{nm}_r', hl2, L)):
                Y(f'{lab}:'); spin(Y, 1)
                for o in ld: Y(o)
                Y('s_waitcnt vmcnt(8)')
                m2 = mmf(LL); c2 = check_ops(range(LL, LL+8), T, T0)
                Y(m2[0]); Y(c2[0]); Y(m2[1])
                for o in c2[1:] + pk: Y(o)
                Y(f's_cbranch_vccnz {other}\n s_branch {nm}')
            R.extend(finalize(Y)[0])
        if cf('sr', 1) == -1: S(f'buffer_store_dwordx2 {V(T2,2)}, {V(vSL)}, {SRD(sWS)}, s{sSLr} offen sc1', tag='sr')
        S(f'buffer_store_dwordx2 {V(T2,2)}, {V(vSL)}, {SRD(sWS)}, s{sSLl} offen {st}', tag='sl')
        if cf('sr', 1) == 0: S(f'buffer_store_dwordx2 {V(T2,2)}, {V(vSL)}, {SRD(sWS)}, s{sSLr} offen sc1', tag='sr')
        stamp(S, cfg, 'h1end')
    else:
        stamp(S, cfg, 'ack'); stamp(S, cfg, 'h1end')
        for r in (accQ, accV):
            for o in zero4(r): S(o)
        updates()
        if flagld:
            nm = f'L_fl_{uid}'
            S(f'v_readfirstlane_b32 s{sT0}, {V(vSL)}\n s_and_b32 s{sT0}, s{sT0}, 0xffff\n s_cmp_lg_u32 s{sT0}, 32\n s_cbranch_scc1 {nm}_r\n {nm}:')
            Xf = Stream()
            Xf(f'{nm}_r:'); spin(Xf, 3); Xf('s_sleep 8')
            Xf(flagld); Xf(f'v_readfirstlane_b32 s{sT0}, {V(vSL)}\n s_and_b32 s{sT0}, s{sT0}, 0xffff\n s_cmp_lg_u32 s{sT0}, 32\n s_cbranch_scc1 {nm}_r\n s_branch {nm}')
            R.extend(finalize(Xf)[0])
            S(f's_add_u32 s{sFl}, s{sStep}, 3\n s_min_u32 s{sFl}, s{sFl}, 63\n s_lshr_b32 s{sT0}, s{sFl}, 3\n s_add_u32 s{sT0}, s{sT0}, {fl["kvq"]}')
            S(f's_cmp_lt_u32 s{sFl}, 4\n s_cselect_b32 s{sFl}, {fl["kv0"]}, s{sT0}\n s_lshl_b32 s{sFl}, s{sFl}, 2')
        if km: S.wait('vm', 'km')
    S('s_barrier')
    stamp(S, cfg, 'bar0')
    if red and cf('sr', 1) == 1: S(f'buffer_store_dwordx2 {V(T2,2)}, {V(vSL)}, {SRD(sWS)}, s{sSLr} offen sc1', tag='sr')
    S(f's_add_u32 s{sStep}, s{sStep}, 1')
    for o in zero4(accK): S(o)
    pause(S, cf('d_g1', 200))
    stamp(S, cfg, 'g1')
    for g in g1: S(g[0])
    if cf('gxearly', False):
        for g in gx: S(g[0])
    nm = f'L_c3_{uid}'
    g1r = [x for g in g1 for x in g[2]]
    g1b = [gather(AB[1], sGA, base1 + w*1024)]
    if len(g1) > 1: g1b.append(gather(AB[2], sGC, base1 + 4096 + w*1024))
    n1 = len(g1)
    g1br = [x for g in g1b for x in g[2]]
    pause(S, cf('pipe3', 100))
    for g in g1b: S(g[0])
    e2 = cf('early2', None)
    if e2 is not None:
        pause(S, e2)
        for g in g2: S(g[0])
    cko = check_ops(g1r, T, T0)
    stamp(S, cfg, 'g1w')
    S(cko[0]); stamp(S, cfg, 'g1a')
    for o in cko[1:]: S(o)
    for g in g1: S(g[1], tag='aw')
    S(f's_cbranch_vccnz {nm}_r'); S(f'{nm}:')
    Xg = Stream()
    Xg(f'{nm}_r:'); spin(Xg, 3)
    if e2 is not None:
        Xg(f's_waitcnt vmcnt({len(g2)})')
        for o in check_ops(g1br, T, T0): Xg(o)
        Xg(f's_cbranch_vccnz {nm}_r3')
        for g in g1b: Xg(g[1])
        Xg(f's_branch {nm}')
        Xg(f'{nm}_r3:')
        for g in g1b: Xg(g[0])
        Xg(f'{nm}_r1:'); spin(Xg, 3)
    for g in g1: Xg(g[0])
    Xg(f's_waitcnt vmcnt({n1})')
    for o in check_ops(g1br, T, T0): Xg(o)
    Xg(f's_cbranch_vccnz {nm}_r2')
    for g in g1b: Xg(g[1])
    Xg(('s_waitcnt vmcnt(0)\n ' if e2 is not None else '') + f's_branch {nm}')
    Xg(f'{nm}_r2:')
    for g in g1b: Xg(g[0])
    Xg(f's_waitcnt vmcnt({n1})')
    for o in check_ops(g1r, T, T0): Xg(o)
    Xg(f's_cbranch_vccnz {nm}_{"r" if e2 is None else "r1"}')
    for g in g1: Xg(g[1])
    Xg(('s_waitcnt vmcnt(0)\n ' if e2 is not None else '') + f's_branch {nm}')
    R.extend(finalize(Xg)[0])
    stamp(S, cfg, 'h2end')
    for g in ([] if cf('gxearly', False) else gx) + (g2 if e2 is None else []): S(g[0])
    if cfg.get('stamps') and not cfg.get('trace'):
        S('s_waitcnt lgkmcnt(0)')
        for i in range(len(cfg['stamps']) - 1):
            S(f's_sub_u32 s{sT0}, s{sStamp+2*i+2}, s{sStamp+2*i}\n s_add_u32 s{80+i}, s{80+i}, s{sT0}')
    if cfg.get('trace'):
        S('s_waitcnt lgkmcnt(0)')
        for i in range(len(cfg['stamps'])): S(f'v_writelane_b32 {V(T1)}, s{sStamp+2*i}, {i}')
        for i in range(3): S(f'v_writelane_b32 {V(T1)}, s{88+i}, {13+i}')
        S(f'v_lshrrev_b32 {V(T2)}, 2, {V(vL16)}\n s_mov_b64 exec, 0xffff\n buffer_store_dword {V(T1)}, {V(T2)}, {SRD(sWS)}, s{sTr} offen\n s_mov_b64 exec, -1\n s_add_u32 s{sTr}, s{sTr}, 64')
    S('s_waitcnt lgkmcnt(0)'); S('s_barrier')

def final_record(S, cfg):
    record, kmst = cfg['_record']
    record(S); S(kmst)

def rowpart(f):
    if f[0] == 'O': return 32 * f[2]
    k = f[1]; tau, hf = k >> 1, k & 1
    return 128 * (tau >> 1) + 16 * hf + (tau & 1)

def prologue(S, plan, cfg, karg):
    st = cfg.get('st', '')
    c = plan.c
    ln = 73
    aQ0, aQ1, aO0, aO1, vRD = 48, 49, 50, 51, 52
    sync = cfg.get('sync')
    S(f'''
    s_load_dwordx2 s[60:61], s[0:1], {karg["Wq"]}
    s_load_dwordx2 s[62:63], s[0:1], {karg["Wk"]}
    s_load_dwordx2 s[64:65], s[0:1], {karg["Wv"]}
    s_load_dwordx2 s[66:67], s[0:1], {karg["Wo"]}
    s_load_dwordx2 s[68:69], s[0:1], {karg["mem0"]}
    v_mov_b32 {V(ln)}, v0
    v_lshlrev_b32 {V(vL16)}, 4, {V(ln)}
    v_and_b32 v76, 15, {V(ln)}
    v_lshrrev_b32 v77, 4, {V(ln)}
    v_lshrrev_b32 v78, 1, v77
    v_and_b32 v79, 1, v77
    v_lshlrev_b32 v74, 4, v76
    v_lshlrev_b32 v75, 6, v79
    v_xor_b32 v74, v74, v75
    s_lshr_b32 s{sT0}, s{sWv}, 1
    s_and_b32 s{sT1}, s{sWv}, 1
    s_lshl_b32 s70, s{sT0}, 6
    s_lshl_b32 s71, s{sT1}, 2
    s_add_u32 s70, s70, s71
    v_lshlrev_b32 v75, 5, v78
    v_lshl_add_u32 v75, v79, 3, v75
    v_add_u32 v75, s70, v75
    v_lshlrev_b32 v75, 13, v75
    s_lshl_b32 s71, s{sH}, 8
    v_add3_u32 {V(aQ0)}, v75, v74, s71
    v_add_u32 {V(aQ1)}, {2*8192 - 1024}, {V(aQ0)}
    s_lshl_b32 s70, s{sT0}, 4
    s_lshl_b32 s71, s{sT1}, 1
    s_add_u32 s70, s70, s71
    s_lshl_b32 s71, s{sH}, 7
    s_add_u32 s70, s70, s71
    v_lshlrev_b32 v75, 3, v78
    v_lshl_add_u32 v75, v79, 2, v75
    v_add_u32 v75, s70, v75
    v_mul_u32_u24 v75, 1280, v75
    v_add_u32 {V(aO0)}, v75, v74
    v_add_u32 {V(aO1)}, {1280 - 1024}, {V(aO0)}
    v_xor_b32 v75, s{sWv}, v79
    v_lshlrev_b32 v75, 6, v75
    v_lshl_add_u32 v75, v77, 8, v75
    v_lshl_add_u32 {V(vRD)}, v76, 2, v75
    v_add_u32 {V(vRD)}, {L_W}, {V(vRD)}
    v_add_u32 {V(vRD+1)}, 36864, {V(vRD)}
    v_add_u32 {V(vRD+2)}, 36864, {V(vRD+1)}
    v_add_u32 {V(vRD+3)}, 36864, {V(vRD+2)}
    s_mul_i32 s72, s{sWv}, 36864
    s_add_u32 s72, s72, {L_W}
    v_add_u32 {V(vWL)}, s72, {V(vL16)}
    s_lshl_b32 s{sT0}, s{sH}, 2
    s_add_u32 s{sT0}, s{sT0}, s{sWv}
    s_lshl_b32 s{sT1}, s{sT0}, 12
    s_add_u32 s{sKV}, s{sT1}, {WS_KVX}
    s_mov_b32 s{sKV2}, s{sKV}
    s_lshl_b32 s{sT1}, s{sT0}, 10
    s_add_u32 s{sKM}, s{sT1}, {WS_KMVM - 32*4096}
    s_mov_b32 s{sW+2}, {640*4096*2}
    s_mov_b32 s{sW+3}, 0x20000
    ''')
    S('s_waitcnt lgkmcnt(0)')
    base = {'Q': 60, 'K': 62, 'V': 64, 'O': 66}
    order = {'Q': 0, 'K': 1, 'V': 2, 'O': 3}
    units = sorted(list(plan.reg.keys()), key=lambda f: (order[f[0]],) + f[1:])
    n0 = len(units); nl = len(plan.lds)
    slot_of = {u: u % 18 for u in range(n0)}
    free = [(n0 + j) % 18 for j in range(18)]
    for i in [s_ for s_ in free if s_ < nl]:
        slot_of[len(units)] = i; units.append(plan.lds[i])
    prev_user = {}
    for u in range(len(units)):
        prev_user[u] = max([v for v in range(u) if slot_of[v] == slot_of[u]], default=-1)
    cur = [None]
    def issue(u):
        f = units[u]; kind = f[0]; slot = slot_of[u]
        if cur[0] != kind:
            S(f's_mov_b32 s{sW}, s{base[kind]}\n s_mov_b32 s{sW+1}, s{base[kind]+1}'); cur[0] = kind
        off = rowpart(f) * 1280 + f[1] * 256 if kind == 'O' else rowpart(f) * 8192
        a0, a1 = (aO0, aO1) if kind == 'O' else (aQ0, aQ1)
        S(f's_add_u32 m0, s72, {slot*2048}\n s_mov_b32 s{sT0}, {off}')
        S(f'buffer_load_dwordx4 {V(a0)}, {SRD(sW)}, s{sT0} offen lds', tag=f'u{u}')
        S(f'buffer_load_dwordx4 {V(a1)}, {SRD(sW)}, s{sT0} offen offset:1024 lds', tag=f'u{u}')
    tmp = [12, 56]
    def dst(u):
        f = units[u]
        return plan.reg[f] if f in plan.reg else tmp[u & 1]
    def post(u):
        f = units[u]; src = dst(u)
        if f in plan.lds:
            i = plan.lds.index(f)
            for hh in range(2): S(f'ds_write_b128 {V(vWL)}, {V(src+4*hh,4)} offset:{i*2048+hh*1024}')
    S(f'''
    s_mov_b32 s{sW}, s68
    s_mov_b32 s{sW+1}, s69
    s_mov_b32 s{sW+2}, 10240
    v_lshrrev_b32 v74, 2, v76
    v_lshlrev_b32 v74, 1, v74
    v_and_b32 v75, 1, {V(ln)}
    v_add_u32 v74, v74, v75
    v_mul_u32_u24 v74, 1280, v74
    v_lshl_add_u32 v74, v77, 6, v74
    v_bfe_u32 v75, {V(ln)}, 1, 1
    v_lshl_add_u32 v74, v75, 5, v74
    s_lshr_b32 s{sT0}, s{sWv}, 1
    s_lshl_b32 s{sT0}, s{sT0}, 8
    ''')
    m0set = ((2*plan.own[0], AB[3], 28), (2*plan.rem[0], GB, 64), (4, GC, 56))
    for t0, d, raw in m0set:
        S(f'buffer_load_dwordx4 {V(raw,4)}, v74, {SRD(sW)}, s{sT0} offen offset:{t0*128}')
        S(f'buffer_load_dwordx4 {V(raw+4,4)}, v74, {SRD(sW)}, s{sT0} offen offset:{t0*128+16}')
    S(f's_mov_b32 s{sW+2}, {640*4096*2}')
    issued = [u for u in range(len(units)) if prev_user[u] < 0]
    for u in issued: issue(u)
    consts(S, plan, cfg, ln)
    NU = len(units)
    def flagwait(name, load, cond):
        S(cond); S(f's_cbranch_scc0 {name}\n {name}_ok:')
        Y = Stream(); Y(f'{name}:')
        Y(f's_add_u32 s{sSpin}, s{sSpin}, 1\n s_cmp_gt_u32 s{sSpin}, 3000000\n s_cbranch_scc1 {cfg.get("fail", "L_chain_fail")}\n s_sleep 8')
        Y(load); Y('s_waitcnt vmcnt(0)'); Y(cond); Y(f's_cbranch_scc0 {name}\n s_branch {name}_ok')
        cfg.setdefault('_ool', []).extend(finalize(Y)[0])
    for u in range(NU):
        S.wait('vm', f'u{u}'); S('s_waitcnt lgkmcnt(0)'); S('s_barrier')
        if u > 0:
            post(u - 1)
            for v in range(NU):
                if prev_user[v] == u - 1: issue(v)
        for w2 in range(4):
            S(f'ds_read2st64_b32 {Rg(dst(u)+2*w2,2)}, {V(vRD+w2)} offset0:{slot_of[u]*8} offset1:{slot_of[u]*8+4}')
        if u == 0:
            S(f's_and_b32 s{sT1}, s{sWv}, 1\n s_mul_i32 s{sT1}, s{sT1}, 0x02020202\n s_add_u32 s{sT1}, s{sT1}, 0x05040100')
            S(f's_lshl_b32 s70, s{sWv}, 10\n v_add_u32 v75, s70, {V(vL16)}')
            for t0, d, raw in m0set:
                for r in range(4): S(f'v_perm_b32 {V(d+r)}, {V(raw+1+2*r)}, {V(raw+2*r)}, s{sT1}')
                S(f'ds_write_b128 v75, {V(d,4)} offset:{L_MEM + t0*1024}')
        if sync:
            ldr = (f'buffer_load_dwordx2 v[8:9], off, {SRD(sDBG)}, 0 offset:{sync["ready"]*4} sc1\n'
                   f'buffer_load_dword v10, off, {SRD(sDBG)}, 0 offset:{sync["kv0"]*4} sc1')
            ua = cfg.get('arm_at', 2)
            if u == ua and not cfg.get('abl_arm'): arm_remote(S, plan, None, 0)
            if u == ua + 4 and not cfg.get('abl_arm'): arm_remote(S, plan, None, 8192)
            if u == ua + 24:
                S(f's_cmp_lg_u32 s{sWv}, 0\n s_cbranch_scc1 L_nordy{c}\n v_mov_b32 v8, 1\n s_mov_b64 exec, 1')
                S(f'buffer_atomic_add v8, off, {SRD(sDBG)}, 0 offset:{sync["ready"]*4}\n s_mov_b64 exec, -1\n L_nordy{c}:')
            if u == NU - cfg.get('rdy_ahead', 12): S(ldr)
            if u == NU - 1:
                flagwait(f'L_rdy{c}', ldr, f'v_readfirstlane_b32 s70, v8\n v_readfirstlane_b32 s71, v10\n v_readfirstlane_b32 s60, v9\n s_lshl_b32 s71, s71, 16\n s_or_b32 s70, s70, s71\n'
                                          f's_cmp_eq_u32 s60, 0\n s_cselect_b32 s70, 0, s70\n s_cmp_eq_u32 s70, {64 + (32 << 16)}')
                for o in ld_kv(0, KX): S(o)
                S(f's_add_u32 s{sKV}, s{sKV}, {32*16384}\n s_sub_u32 s60, s60, 1\n s_lshl_b32 s60, s60, 13')
                apply_near(S, plan, 60)
    S('s_waitcnt lgkmcnt(0)'); S('s_barrier'); post(NU - 1)
    S('s_waitcnt lgkmcnt(0)')
    for j in range(2):
        for o in ld_frag(plan, plan.seq[j], P[j]): S(o)
    for r in (accQ, accK, accV):
        for o in zero4(r): S(o)
    S(f's_mov_b32 s{sStep}, 0\n s_mov_b32 s{sSpin}, 0\n s_mov_b32 s{sForce}, 1')
    if cfg.get('stamps') or cfg.get('count'):
        for i in range(11): S(f's_mov_b32 s{80+i}, 0')
        S(f's_lshl_b32 s{sTr}, s{sH}, 2\n s_add_u32 s{sTr}, s{sTr}, s{sWv}\n s_add_u32 s{sTr}, s{sTr}, {128*c}\n s_lshl_b32 s{sTr}, s{sTr}, 12\n s_add_u32 s{sTr}, s{sTr}, 0x100000')
    S('s_waitcnt lgkmcnt(0)' if sync else 's_waitcnt vmcnt(0) lgkmcnt(0)')

def apply_near(S, plan, sreg):
    S(f's_add_u32 s{sSLr}, s{sSLr}, s{sreg}\n s_add_u32 s{sGB}, s{sGB}, s{sreg}')
    if plan.c == 1: S(f's_add_u32 s{sGC}, s{sGC}, s{sreg}')

def arm_remote(S, plan, sreg, near=0):
    c = plan.c; n = len(plan.own)
    S(f'''
    s_lshl_b32 s{sT0}, s{sH}, 16
    s_lshr_b32 s{sT1}, s{sWv}, 1
    v_mov_b32 v16, s{sT1}
    v_mov_b32 v17, s{sT1}
    v_mov_b32 v18, s{sT1}
    v_mov_b32 v19, s{sT1}
    s_lshl_b32 s{sT1}, s{sT1}, 15
    s_add_u32 s{sT0}, s{sT0}, s{sT1}
    s_and_b32 s{sT1}, s{sWv}, 1
    s_mul_i32 s{sT1}, s{sT1}, {n*1024}
    s_add_u32 s{sT0}, s{sT0}, s{sT1}
    s_add_u32 s{sT0}, s{sT0}, {WS_MB2R + c*16384 + near}
    ''')
    if sreg is not None: S(f's_add_u32 s{sT0}, s{sT0}, s{sreg}')
    for j in range(n): S(f'buffer_store_dwordx4 v[16:19], {V(vL16)}, {SRD(sWS)}, s{sT0} offen offset:{j*1024} sc1')

def first_kv(S):
    for o in ld_kv(0, KX): S(o)
    S(f's_add_u32 s{sKV}, s{sKV}, {32*16384}')
    S('s_waitcnt vmcnt(0)')

def consts(S, plan, cfg, ln):
    st = cfg.get('st', '')
    c = plan.c; a0 = plan.own[0]; na = len(plan.own)
    S(f'''
    v_and_b32 v76, 15, {V(ln)}
    v_lshrrev_b32 v77, 4, {V(ln)}
    v_bfe_u32 v75, {V(ln)}, 1, 1
    v_mov_b32 v74, 0x88888888
    v_mov_b32 v78, 0xdddddddd
    v_cmp_eq_u32 vcc, 1, v75
    v_cndmask_b32 {V(vIDX)}, v74, v78, vcc
    v_and_b32 v79, 1, {V(ln)}
    v_lshlrev_b32 v74, 4, v79
    v_mov_b32 v78, 0x3f80
    v_lshlrev_b32 {V(vZ)}, v74, v78
    v_and_b32 {V(vCS)}, 0x3d0, {V(vL16)}
    s_lshl_b32 s{sT0}, s{sWv}, 14
    s_lshl_b32 s{sT1}, s{sH}, 6
    s_add_u32 s{sT0}, s{sT0}, s{sT1}
    v_lshlrev_b32 v74, 11, v77
    v_lshl_add_u32 v74, v76, 2, v74
    v_add_u32 {V(vH1S)}, s{sT0}, v74
    v_lshlrev_b32 {V(vH1L)}, 2, {V(ln)}
    s_mov_b32 s{sPa[0]}, {WS_MB1 + a0*65536}
    s_mov_b32 s{sPa[1]}, {WS_MB1 + a0*65536 + 8192}
    s_mov_b32 s{sPa[2]}, {WS_MB1 + (a0+1)*65536}
    s_mov_b32 s{sPa[3]}, {WS_MB1 + (a0+1)*65536 + 8192}
    s_mov_b32 s{sPa[4]}, {WS_MB1 + (a0+2)*65536}
    s_mov_b32 s{sPa[5]}, {WS_MB1 + (a0+2)*65536 + 8192}
    s_min_u32 s70, s{sWv}, {na - 1}
    s_lshl_b32 s{sT1}, s{sH}, 11
    s_lshl_b32 s{sT0}, s70, 16
    s_add_u32 s{sT0}, s{sT0}, s{sT1}
    s_add_u32 s{sH1}, s{sT0}, {WS_MB1 + a0*65536}
    s_bfe_u32 s{sT0}, s{sH}, 0x10002
    s_lshl_b32 s{sT0}, s{sT0}, 10
    s_lshr_b32 s{sT1}, s{sH}, 3
    s_lshl_b32 s{sT1}, s{sT1}, 8
    s_add_u32 s{sT0}, s{sT0}, s{sT1}
    s_and_b32 s{sT1}, s{sH}, 3
    s_lshl_b32 s{sT1}, s{sT1}, 6
    s_add_u32 s{sT0}, s{sT0}, s{sT1}
    v_lshrrev_b32 v74, 1, v77
    v_lshlrev_b32 v74, 5, v74
    v_lshl_add_u32 v74, v79, 4, v74
    v_and_b32 v78, 1, v77
    v_lshl_add_u32 v74, v78, 3, v74
    v_add_u32 v74, s{sT0}, v74
    v_cmp_gt_u32 vcc, 2, v76
    v_mov_b32 v78, 0x7ffffff0
    v_cndmask_b32 {V(vSL)}, v78, v74, vcc
    s_lshl_b32 s{sT0}, s70, 11
    s_add_u32 s{sSLl}, s{sT0}, {WS_MB2L + a0*2048}
    s_add_u32 s{sSLr}, s{sT0}, {WS_MB2R + c*16384 + cfg.get('near', 0)}
    s_mov_b32 s{sC}, {f2u(128**-0.5 * math.log2(math.e))}
    s_lshl_b32 s{sT0}, s{sWv}, 10
    s_add_u32 s{sGA}, s{sT0}, {WS_MB2L + a0*2048}
    s_add_u32 s{sGB}, s{sT0}, {WS_MB2R + (1-c)*16384 + cfg.get('near', 0)}
    s_add_u32 s{sGC}, s{sGA if c == 0 else sGB}, 4096
    s_mov_b32 s{sC2}, s{sC}
    s_mov_b32 s{sC2+1}, s{sC}
    s_mov_b32 s{sLo}, {f2u(2.0**-cfg.get('smexp', 40))}
    s_mov_b32 s{sRng}, {f2u(2.0**cfg.get('smexp', 40)) - f2u(2.0**-cfg.get('smexp', 40))}
    s_mov_b32 s{sFl}, {(cfg.get('flags') or {}).get('kv0', 0) * 4}
    s_mov_b32 s{mA}, 0xcccccccc
    s_mov_b32 s{mA+1}, 0xcccccccc
    s_mov_b32 s{mR}, 0x00030003
    s_mov_b32 s{mR+1}, 0x00030003
    v_mov_b32 v12, 1
    v_mov_b32 v13, 1
    v_mov_b32 v14, 1
    v_mov_b32 v15, 1
    buffer_store_dwordx4 v[12:15], {V(vL16)}, {SRD(sWS)}, s{sH1} offen {st}
    buffer_store_dwordx4 v[12:15], {V(vL16)}, {SRD(sWS)}, s{sH1} offen offset:1024 {st}
    buffer_store_dwordx2 v[12:13], {V(vSL)}, {SRD(sWS)}, s{sSLl} offen {st}
    {'' if cfg.get('fresh', True) else f'buffer_store_dwordx2 v[12:13], {V(vSL)}, {SRD(sWS)}, s{sSLr} offen sc1'}
    ''')
    if not cfg.get('sync'): arm_remote(S, plan, None, cfg.get('near', 0))
    fl = cfg.get('flags')
    if fl and c == 1:
        S(f'''
        s_lshl_b32 s{sProg}, s{sH}, 7
        s_add_u32 s{sProg}, s{sProg}, {fl["prog"]}
        s_lshl_b32 s{sT0}, s{sH}, 8
        s_add_u32 s{sT0}, s{sT0}, {fl["t2"]}
        v_mov_b32 v16, 0
        s_mov_b64 exec, 1
        buffer_store_dword v16, off, {SRD(sWS)}, s{sProg} sc1
        buffer_store_dword v16, off, {SRD(sWS)}, s{sT0} sc1
        buffer_store_dword v16, off, {SRD(sWS)}, s{sT0} offset:128 sc1
        s_mov_b64 exec, -1
        ''')
    mq = sum(3 << (20*g + 2) for g in range(4)); mk = sum(3 << (20*g) for g in range(4))
    S(f's_mov_b32 s{mSq}, {mq & 0xffffffff}\n s_mov_b32 s{mSq+1}, {mq >> 32}\n s_mov_b32 s{mSk}, {mk & 0xffffffff}\n s_mov_b32 s{mSk+1}, {mk >> 32}')

def loops(plan, cfg, pref='L_chain'):
    out = []
    for w in range(4):
        S = Stream(); R = []
        step(S, R, plan, w, 0, cfg, f'{pref}{w}e')
        step(S, R, plan, w, 1, cfg, f'{pref}{w}o')
        S(f's_branch {pref}_w{w}')
        body = finalize_loop(S)
        out.append('.p2align 6'); out.append(f'{pref}_w{w}:'); out += body; out += R
    return out
```

```python
from sched import Stream, finalize, finalize_loop, State
from chain4 import V, SRD, SP, f2u
def A(a, n=1): return f'a{a}' if n == 1 else f'a[{a}:{a+n-1}]'

sWS, sDBG = 4, 8
sX, sW0, sW1, sO = 12, 20, 24, 28
sWv, sId, sSpin = 17, 16, 19
sXo, sW0o, sW1o, sLdw4, sLdw64, sM0x, sM0w, sT0, sT1, sT2, sKs = 32, 33, 34, 35, 36, 37, 38, 39, 40, 41, 42
sE0, sE1, sE2, sE3 = 43, 44, 45, 46
vLn = 0
vXa, vXb, vW = 1, 2, 3
vXr = 4
vWT = 8
vWN = 12
vE = 16
XF = [24, 32]
WF = [40, 72]
EP = 104
def acc(j, mt, nt): return ((j * 2 + mt) * 4 + nt) * 16

def setup_lane_consts(S):
    S(f'''
    v_lshrrev_b32 v16, 3, {V(vLn)}
    v_mul_u32_u24 v16, 1280, v16
    v_and_b32 v17, 7, {V(vLn)}
    v_lshrrev_b32 v18, 4, {V(vLn)}
    v_xor_b32 v17, v17, v18
    v_lshl_add_u32 {V(vXa)}, v17, 4, v16
    v_xor_b32 {V(vXb)}, 64, {V(vXa)}
    v_and_b32 v16, 31, {V(vLn)}
    v_and_b32 v17, 0x13, v16
    v_bfe_u32 v18, v16, 2, 1
    v_lshl_add_u32 v17, v18, 3, v17
    v_bfe_u32 v18, v16, 3, 1
    v_lshl_add_u32 v17, v18, 2, v17
    v_bfe_u32 v18, v17, 1, 3
    v_lshrrev_b32 v19, 5, {V(vLn)}
    v_xor_b32 v18, v18, v19
    v_lshlrev_b32 v18, 4, v18
    v_lshl_add_u32 v18, v17, 7, v18
    s_lshl_b32 s{sT0}, s{sWv}, 13
    v_add_u32 {V(vXr)}, s{sT0}, v18
    v_xor_b32 {V(vXr+1)}, 32, {V(vXr)}
    v_xor_b32 {V(vXr+2)}, 64, {V(vXr)}
    v_xor_b32 {V(vXr+3)}, 0x60, {V(vXr)}
    v_bfe_u32 v16, {V(vLn)}, 2, 2
    v_lshl_add_u32 v17, v19, 3, v16
    v_lshlrev_b32 v17, 8, v17
    v_lshl_add_u32 v17, v16, 6, v17
    v_bfe_u32 v18, {V(vLn)}, 4, 1
    v_lshl_add_u32 v17, v18, 5, v17
    v_and_b32 v18, 1, {V(vLn)}
    v_bfe_u32 v19, {V(vLn)}, 1, 1
    v_lshl_add_u32 v16, v18, 4, v17
    v_lshl_add_u32 {V(vWT)}, v19, 3, v16
    v_lshl_add_u32 v16, v19, 4, v17
    v_lshl_add_u32 {V(vWN)}, v18, 3, v16
    ''')
    for b in (vWT, vWN):
        for nt in range(1, 4): S(f'v_xor_b32 {V(b+nt)}, {nt*64}, {V(b)}')
    S(f's_lshl_b32 s{sM0x}, s{sWv}, 13\n s_lshl_b32 s{sM0w}, s{sWv}, 12\n s_add_u32 s{sM0w}, s{sM0w}, 32768')

def setup_task(S, ldw_sreg, rows_sreg=None):
    S(f'''
    s_mul_i32 s{sT0}, s{sWv}, {64*1280 if rows_sreg is None else 's%d' % rows_sreg}
    s_add_u32 s{sXo}, s{sXo}, s{sT0}
    s_lshl_b32 s{sLdw4}, s{ldw_sreg}, 2
    s_lshl_b32 s{sLdw64}, s{ldw_sreg}, 6
    v_lshrrev_b32 v16, 4, {V(vLn)}
    s_lshl_b32 s{sT0}, s{sWv}, 4
    v_add_u32 v17, s{sT0}, v16
    v_mul_lo_u32 v17, v17, s{ldw_sreg}
    v_lshlrev_b32 v16, 2, v16
    v_and_b32 v18, 15, {V(vLn)}
    v_xor_b32 v16, v16, v18
    v_lshl_add_u32 {V(vW)}, v16, 4, v17
    ''')

def dma_ops(stage, xfl='', wfl='', MT=2):
    G = []
    nx = 4 * MT
    for i in range(nx):
        G.append(f's_add_u32 m0, s{sM0x}, {stage*65536 + i*1024}\n s_add_u32 s{sT0}, s{sXo}, {i*10240}\n buffer_load_dwordx4 {V(vXb if i & 1 else vXa)}, {SRD(sX)}, s{sT0} offen {xfl} lds')
    for j in range(2):
        so, srd = (sW0o, sW0) if j == 0 else (sW1o, sW1)
        for i in range(4):
            pre = f's_mov_b32 s{sT1}, s{so}' if i == 0 else f's_add_u32 s{sT1}, s{sT1}, s{sLdw4}'
            G.append(f's_add_u32 m0, s{sM0w}, {stage*65536 + j*16384 + i*1024}\n {pre}\n buffer_load_dwordx4 {V(vW)}, {SRD(srd)}, s{sT1} offen {wfl} lds')
    G[nx-1] += f'\n s_add_u32 s{sXo}, s{sXo}, 128'
    G[-1] += f'\n s_add_u32 s{sW0o}, s{sW0o}, s{sLdw64}\n s_add_u32 s{sW1o}, s{sW1o}, s{sLdw64}'
    return G[nx:] + G[:nx]

def read_ops(ks, buf, ori, MT=2):
    R = [f'ds_read_b128 {V(XF[buf]+4*mt,4)}, {V(vXr+ks)} offset:{mt*4096}' for mt in range(MT)]
    Wr = []
    for j in range(2):
        b = vWT if ori[j] == 'T' else vWN
        for nt in range(4):
            for jj in range(2):
                Wr.append(f'ds_read_b64_tr_b16 {V(WF[buf]+16*j+4*nt+2*jj,2)}, {V(b+nt)} offset:{32768 + j*16384 + ks*4096 + jj*1024}')
    return [R[0], Wr[0], Wr[1]] + R[1:] + Wr[2:]

def mfma_ops(buf, ori, zero=False, MT=2):
    M = []
    for j in range(2):
        for nt in range(4):
            for mt in range(MT):
                x = V(XF[buf] + 4*mt, 4); w = V(WF[buf] + 16*j + 4*nt, 4); d = A(acc(j, mt, nt), 16)
                a, b = (w, x) if ori[j] == 'T' else (x, w)
                M.append(f'v_mfma_f32_32x32x16_bf16 {d}, {a}, {b}, {"0" if zero else d}')
    return M

def interleave(S, mf, side, per=2):
    side = list(side)
    for m in mf:
        S(m)
        for _ in range(per):
            if side: S(side.pop(0))
    for o in side: S(o)

def toggle_ops():
    return [f'v_xor_b32 {V(r)}, 0x10000, {V(r)}' for r in list(range(vXr, vXr+4)) + list(range(vWT, vWT+4)) + list(range(vWN, vWN+4))]

def mix(reads, extra, n=16):
    reads = list(reads); extra = list(extra); out = []
    for i in range(n):
        o = [reads.pop(0) for _ in range(2) if reads]
        if extra and (i & 1): o.append(extra.pop(0))
        out.append(o)
    out[-1] += reads + extra
    return out
def weave(S, mf, sides):
    for m, sd in zip(mf, sides):
        S(m)
        for o in sd: S(o)

def core(ori, name, xfl='', wfl=''):
    P = Stream()
    for g in dma_ops(0, xfl, wfl): P(g)
    d1 = dma_ops(1, xfl, wfl)
    for g in d1[:8]: P(g)
    P('s_waitcnt vmcnt(8)\n s_barrier')
    for o in read_ops(0, 0, ori): P(o)
    weave(P, mfma_ops(0, ori, zero=True), mix(read_ops(1, 1, ori), d1[8:]))
    P(f's_mov_b32 s{sKs}, 0')
    P(f's_waitcnt lgkmcnt(0)\n s_branch {name}_in')
    tg = toggle_ops()
    def stage(S, st, dma_a, dma_b, label=None, last=False):
        weave(S, mfma_ops(0, ori), mix(read_ops(1, 1, ori), dma_a))
        if label: S(f'{label}:')
        weave(S, mfma_ops(1, ori), mix(read_ops(2, 0, ori), []))
        sd = mix(read_ops(3, 1, ori), [])
        for k in range(6): sd[10 + k] += tg[2*k:2*k+2]
        weave(S, mfma_ops(0, ori), sd)
        if last:
            weave(S, mfma_ops(1, ori), [[]] * 16)
        else:
            S('s_waitcnt vmcnt(0) lgkmcnt(0)\n s_barrier')
            weave(S, mfma_ops(1, ori), mix(read_ops(0, 0, ori), dma_b))
    d0 = dma_ops(0, xfl, wfl)
    L = Stream()
    stage(L, 0, d1[8:], d0[:8], f'{name}_in')
    stage(L, 1, d0[8:], d1[:8])
    L(f's_add_u32 s{sKs}, s{sKs}, 1\n s_cmp_lt_u32 s{sKs}, 4\n s_cbranch_scc1 {name}_loop')
    body = finalize_loop(L)
    F = Stream()
    F('s_waitcnt lgkmcnt(0)')
    stage(F, 0, d1[8:], [])
    stage(F, 1, [], [], last=True)
    F('s_nop 7\n s_nop 7')
    return finalize(P)[0] + ['.p2align 6', f'{name}_loop:'] + body + finalize(F)[0]

def tile_pack(S, a0, dst, scale=None):
    t = EP + 32
    for r in range(16): S(f'v_accvgpr_read_b32 {V(t+r)}, {A(a0+r)}')
    if scale is not None:
        for r in range(16): S(f'v_mul_f32 {V(t+r)}, s{scale}, {V(t+r)}')
    for r in range(8): S(f'v_cvt_pk_bf16_f32 {V(dst+r)}, {V(t+2*r)}, {V(t+2*r+1)}')

def lane_key(S, d, t):
    S(f'''
    v_and_b32 {V(d)}, 0x13, {V(vLn)}
    v_bfe_u32 {V(t)}, {V(vLn)}, 2, 1
    v_lshl_add_u32 {V(d)}, {V(t)}, 3, {V(d)}
    v_bfe_u32 {V(t)}, {V(vLn)}, 3, 1
    v_lshl_add_u32 {V(d)}, {V(t)}, 2, {V(d)}
    ''')

def frag_addr_T(S, d):
    S(f'''
    v_bfe_u32 v17, {V(vLn)}, 3, 1
    v_lshlrev_b32 {V(d)}, 10, v17
    v_bfe_u32 v17, {V(vLn)}, 4, 1
    v_lshl_add_u32 {V(d)}, v17, 7, {V(d)}
    v_bfe_u32 v17, {V(vLn)}, 2, 1
    v_lshl_add_u32 {V(d)}, v17, 6, {V(d)}
    v_and_b32 v17, 3, {V(vLn)}
    v_lshl_add_u32 {V(d)}, v17, 4, {V(d)}
    v_lshrrev_b32 v17, 5, {V(vLn)}
    v_lshl_add_u32 {V(d)}, v17, 8, {V(d)}
    ''')
def frag_addr_N(S, d):
    S(f'''
    v_and_b32 v17, 1, {V(vLn)}
    v_lshlrev_b32 {V(d)}, 10, v17
    v_bfe_u32 v17, {V(vLn)}, 1, 4
    v_lshl_add_u32 {V(d)}, v17, 4, {V(d)}
    v_lshrrev_b32 v17, 5, {V(vLn)}
    v_lshl_add_u32 {V(d)}, v17, 8, {V(d)}
    ''')

def epi_frags(S, kinds, seg_stride, nt_stride, j_off, j_off_sreg=None):
    frag_addr_T(S, vE + 2); frag_addr_N(S, vE + 3)
    n = 0
    for j in range(2):
        av = vE + 2 if kinds[j] == 'T' else vE + 3
        for mt in range(2):
            for nt in range(4):
                d = EP + 8 * (n & 3); n += 1
                tile_pack(S, acc(j, mt, nt), d)
                S(f's_add_u32 s{sT0}, s{sE0}, {mt*seg_stride + nt*nt_stride + j*j_off}')
                for u in range(2):
                    S(f'buffer_store_dwordx4 {V(d+4*u,4)}, {V(av)}, {SRD(sWS)}, s{sT0} offen offset:{u*512} sc1')

def epi_rows(S, ld, srd, fl, scale=None, nj_sreg=None, uid=''):
    S(f'''
    v_and_b32 {V(vE+2)}, 3, {V(vLn)}
    v_bfe_u32 v17, {V(vLn)}, 2, 1
    v_lshl_add_u32 {V(vE+2)}, v17, 3, {V(vE+2)}
    v_bfe_u32 v17, {V(vLn)}, 3, 1
    v_lshl_add_u32 {V(vE+2)}, v17, 2, {V(vE+2)}
    v_mul_u32_u24 {V(vE+2)}, {ld}, {V(vE+2)}
    v_lshrrev_b32 v17, 5, {V(vLn)}
    v_lshl_add_u32 {V(vE+2)}, v17, 4, {V(vE+2)}
    v_bfe_u32 v17, {V(vLn)}, 4, 1
    v_lshl_add_u32 {V(vE+2)}, v17, 5, {V(vE+2)}
    ''')
    n = 0
    for j in range(2):
        if j == 1 and nj_sreg is not None:
            S(f's_cmp_lt_u32 s{nj_sreg}, 2\n s_cbranch_scc1 L_rows_done{uid}')
        for mt in range(2):
            S(f's_add_u32 s{sT0}, s{sE0}, {mt*32*ld + j*256}\n s_add_u32 s{sT1}, s{sT0}, {16*ld}')
            for nt in range(4):
                d = EP + 8 * (n & 3); n += 1
                tile_pack(S, acc(j, mt, nt), d, scale)
                for r in range(4): S(f'v_permlane16_swap_b32 {V(d+r)}, {V(d+4+r)}')
                for u in range(2):
                    S(f'buffer_store_dwordx4 {V(d+4*u,4)}, {V(vE+2)}, {SRD(srd)}, s{sT1 if u else sT0} offen offset:{nt*64} {fl}')
    if nj_sreg is not None: S(f'L_rows_done{uid}:')

def epi_akv(S):
    S(f'''
    v_lshlrev_b32 {V(vE+2)}, 4, {V(vLn)}
    v_and_b32 v17, 31, {V(vLn)}
    v_cmp_eq_u32 vcc, 20, v17
    v_mov_b32 v17, 0x3f803f80
    ''')
    for j in range(2):
        for mt in range(2):
            d = EP + 8 * (2*j + mt)
            tile_pack(S, acc(j, mt, 0), d)
            if j == 1:
                for r in range(8): S(f'v_cndmask_b32 {V(d+r)}, {V(d+r)}, v17, vcc')
            S(f's_add_u32 s{sT0}, s{sE0}, {mt*4096}')
            for u in range(2):
                S(f'buffer_store_dwordx4 {V(d+4*u,4)}, {V(vE+2)}, {SRD(sWS)}, s{sT0} offen offset:{j*2048 + u*1024} sc1')


PKD = 104
TP = 232
vP0, vP1 = 20, 21
sPD = 88
sP, sDU, sDN, sDM, sDJ, sPF, sPV = 92, 93, 94, 95, 96, 61, 62

def pend_ops():
    ops = []
    for k in range(32):
        j, mt, nt, u = k >> 4, (k >> 3) & 1, (k >> 1) & 3, k & 1
        d = sDU if u == 0 else sDN if nt < 3 else sDM if mt == 0 else sDJ
        ops.append(f'buffer_store_dwordx4 {V(PKD+4*k,4)}, {V(vP1 if j else vP0)}, {SRD(sPD)}, s{sP} offen sc1\n s_add_u32 s{sP}, s{sP}, s{d}')
    return ops
def pend_signal(S, uid):
    S(f'''
    s_cmp_lg_u32 s{sWv}, 0
    s_cbranch_scc1 L_ps_{uid}
    v_mov_b32 v22, s{sPV}
    s_mov_b64 exec, 1
    buffer_atomic_add v22, off, {SRD(sDBG)}, s{sPF}
    s_mov_b64 exec, -1
    L_ps_{uid}:
    s_mov_b32 s{sPD+2}, 0
    s_mov_b32 s{sPV}, 0
    ''')
def flush(S, uid):
    for o in pend_ops(): S(o)
    S('s_waitcnt vmcnt(0)\n s_barrier')
    pend_signal(S, uid)
def set_strides(S, su, sn, sm, sj):
    S(f's_mov_b32 s{sDU}, {su}\n s_mov_b32 s{sDN}, {sn - su}\n s_mov_b32 s{sDM}, {(sm - 3*sn - su) & 0xffffffff}\n s_mov_b32 s{sDJ}, {(sj - sm - 3*sn - su) & 0xffffffff}')
def pack_all(S, scale=None, rows=False):
    for k in range(16):
        j, mt, nt = k >> 3, (k >> 2) & 1, k & 3
        d = PKD + 8 * k; a0 = acc(j, mt, nt)
        for r in range(16): S(f'v_accvgpr_read_b32 {V(TP+r)}, {A(a0+r)}')
        if scale is not None:
            for r in range(16): S(f'v_mul_f32 {V(TP+r)}, s{scale}, {V(TP+r)}')
        for r in range(8): S(f'v_cvt_pk_bf16_f32 {V(d+r)}, {V(TP+2*r)}, {V(TP+2*r+1)}')
        if rows:
            for r in range(4): S(f'v_permlane16_swap_b32 {V(d+r)}, {V(d+4+r)}')
def rows_addr(S, d, ld):
    S(f'''
    v_and_b32 {V(d)}, 3, {V(vLn)}
    v_bfe_u32 v17, {V(vLn)}, 2, 1
    v_lshl_add_u32 {V(d)}, v17, 3, {V(d)}
    v_bfe_u32 v17, {V(vLn)}, 3, 1
    v_lshl_add_u32 {V(d)}, v17, 2, {V(d)}
    v_mul_lo_u32 {V(d)}, {V(d)}, s{ld}
    v_lshrrev_b32 v17, 5, {V(vLn)}
    v_lshl_add_u32 {V(d)}, v17, 4, {V(d)}
    v_bfe_u32 v17, {V(vLn)}, 4, 1
    v_lshl_add_u32 {V(d)}, v17, 5, {V(d)}
    ''')
def first_dma(S):
    for g in dma_ops(0): S(g)
    for g in dma_ops(1)[:8]: S(g)

def core2(ori, name):
    S = Stream()
    S('s_waitcnt vmcnt(0)\n s_barrier')
    for o in read_ops(0, 0, ori): S(o)
    tg = toggle_ops(); po = pend_ops()
    for n in range(10):
        da = dma_ops((n + 1) & 1)[8:] if n < 9 else []
        db = dma_ops(n & 1)[:8] if n < 8 else []
        st = po[4*n:4*n+4] if n < 8 else []
        weave(S, mfma_ops(0, ori, zero=(n == 0)), mix(read_ops(1, 1, ori), da))
        sd = mix(read_ops(2, 0, ori), [])
        for k, o in enumerate(st): sd[1 + 3*k].append(o)
        weave(S, mfma_ops(1, ori), sd)
        sd = mix(read_ops(3, 1, ori), [])
        for k in range(6): sd[10 + k] += tg[2*k:2*k+2]
        weave(S, mfma_ops(0, ori), sd)
        if n == 9:
            weave(S, mfma_ops(1, ori), [[]] * 16)
        else:
            S('s_waitcnt vmcnt(0) lgkmcnt(0)\n s_barrier')
            if n == 7: pend_signal(S, name)
            weave(S, mfma_ops(1, ori), mix(read_ops(0, 0, ori), db))
    S('s_barrier')
    return finalize(S)[0]

def core_half(name, ws_kvx):
    ori = 'TN'
    def mx(reads, extra, n=8):
        reads = list(reads); extra = list(extra); out = []
        for i in range(n):
            o = [reads.pop(0) for _ in range(3) if reads]
            if extra: o.append(extra.pop(0))
            out.append(o)
        out[-1] += reads + extra
        return out
    d0 = dma_ops(0, MT=1); d1 = dma_ops(1, MT=1); tg = toggle_ops()
    P = Stream()
    for g in d0 + d1[:8]: P(g)
    P('s_waitcnt vmcnt(8)\n s_barrier')
    for o in read_ops(0, 0, ori, 1): P(o)
    weave(P, mfma_ops(0, ori, True, 1), mx(read_ops(1, 1, ori, 1), d1[8:]))
    P(f's_mov_b32 s{sKs}, 0\n s_waitcnt lgkmcnt(0)\n s_branch {name}_in')
    def stage(S, da, db, label=None, last=False):
        weave(S, mfma_ops(0, ori, False, 1), mx(read_ops(1, 1, ori, 1), da))
        if label: S(f'{label}:')
        weave(S, mfma_ops(1, ori, False, 1), mx(read_ops(2, 0, ori, 1), []))
        sd = mx(read_ops(3, 1, ori, 1), [])
        sd[6] += tg[:6]; sd[7] += tg[6:]
        weave(S, mfma_ops(0, ori, False, 1), sd)
        if last: weave(S, mfma_ops(1, ori, False, 1), [[]] * 8)
        else:
            S('s_waitcnt vmcnt(0) lgkmcnt(0)\n s_barrier')
            weave(S, mfma_ops(1, ori, False, 1), mx(read_ops(0, 0, ori, 1), db))
    L = Stream()
    stage(L, d1[8:], d0[:8], f'{name}_in'); stage(L, d0[8:], d1[:8])
    L(f's_add_u32 s{sKs}, s{sKs}, 1\n s_cmp_lt_u32 s{sKs}, 4\n s_cbranch_scc1 {name}_loop')
    F = Stream()
    F('s_waitcnt lgkmcnt(0)')
    stage(F, d1[8:], []); stage(F, [], [], last=True)
    frag_addr_T(F, vE + 2); frag_addr_N(F, vE + 3)
    n = 0
    for j in range(2):
        for nt in range(4):
            d = EP + 8 * (n & 3); n += 1
            tile_pack(F, acc(j, 0, nt), d)
            F(f's_add_u32 s{sT0}, s{sE0}, {nt*4096 + j*2048}')
            for u in range(2):
                F(f'buffer_store_dwordx4 {V(d+4*u,4)}, {V(vE+2+j)}, {SRD(sWS)}, s{sT0} offen offset:{u*512} sc1')
    return finalize(P)[0] + ['.p2align 6', f'{name}_loop:'] + finalize_loop(L) + finalize(F)[0]
```

```python
from chain4 import WS_MB1, WS_MB2L, WS_MB2R, WS_KMVM, WS_KVX, WS_CHAIN_END
WS_QX  = 0x3000000
WS_O   = 0x4000000
WS_QA  = 0x5000000
WS_OA  = 0x5400000
WS_KVA = 0x5800000
assert WS_CHAIN_END <= WS_QX
KARG = dict(Ax=0, Awq=8, Awk=16, Awv=24, Awo=32, Bx=40, mem0=48, Wq=56, Wk=64, Wv=72, Wo=80, out=96, dbg=104, ws=112)
D_TICKET = 0
D_TICKETC = 32
D_KV0 = 28
D_READY = 8
D_NEAR = 9
D_KVQ = 40
D_APROJ = 18
D_OVER = 19
D_T5 = 20
WS_PROG = 0x80000
WS_T2   = 0x82000
```

```python
import sys, math
from asmlib import header, descriptor
from sched import Stream, finalize
import chain4 as C
import gemm as G
import attn as AT
from chain4 import V, SRD, SP, f2u
from layout import *
NAME = 'concat_heads__grouped_kv_mqa__memory_aug_recurrent_mem_tr__prompt_kernel'
sWS, sDBG, sWv, sId, sSpin = 4, 8, 17, 16, 19
PT = 64
ptr = lambda nm: PT + KARG[nm] // 4

def entry(S, cfg):
    S(f'''
    s_cmp_ge_u32 s2, 256
    s_cbranch_scc1 L_end
    s_load_dwordx2 s[4:5], s[0:1], {KARG["ws"]}
    s_load_dwordx2 s[8:9], s[0:1], {KARG["dbg"]}
    s_getreg_b32 s3, hwreg(HW_REG_XCC_ID, 0, 4)
    v_lshrrev_b32 v1, 6, v0
    v_and_b32 v0, 63, v0
    v_readfirstlane_b32 s{sWv}, v1
    s_mov_b32 s6, 0x10000000
    s_mov_b32 s7, 0x20000
    s_mov_b32 s10, 256
    s_mov_b32 s11, 0x20000
    s_mov_b32 s{sSpin}, 0
    s_and_b32 s3, s3, 7
    s_cmp_lt_u32 s3, 2
    s_cselect_b32 s29, {D_TICKETC}, {D_TICKET}
    s_add_u32 s29, s29, s3
    s_lshl_b32 s29, s29, 2
    ''')
    if cfg.get('prof'): S('s_memrealtime s[100:101]')
    S(f'''
    s_waitcnt lgkmcnt(0)
    v_mov_b32 v4, {C.L_MISC}
    s_cmp_lg_u32 s{sWv}, 0
    s_cbranch_scc1 L_noticket
    v_mov_b32 v3, 1
    s_mov_b64 exec, 1
    buffer_atomic_add v3, off, s[8:11], s29 sc0
    s_waitcnt vmcnt(0)
    ds_write_b32 v4, v3
    s_waitcnt lgkmcnt(0)
    s_mov_b64 exec, -1
    L_noticket:
    s_barrier
    ds_read_b32 v3, v4
    s_waitcnt lgkmcnt(0)
    v_readfirstlane_b32 s{sId}, v3
    s_barrier
    s_cmp_ge_u32 s{sId}, 32
    s_cbranch_scc1 L_end
    s_cmp_eq_u32 s3, 0
    s_cbranch_scc1 L_role0
    s_cmp_eq_u32 s3, 1
    s_cbranch_scc1 L_role1
    s_branch L_worker
    ''')

def prof(S, cfg, slot, vt=250):
    if not cfg.get('prof'): return
    S(f'''
    s_memrealtime s[98:99]
    s_lshl_b32 s97, s3, 5
    s_add_u32 s97, s97, s{sId}
    s_lshl_b32 s97, s97, 2
    s_add_u32 s97, s97, s{sWv}
    s_lshl_b32 s97, s97, 6
    s_add_u32 s97, s97, {0x6000000 + slot*4}
    s_waitcnt lgkmcnt(0)
    v_mov_b32 {V(vt)}, s98
    v_mov_b32 {V(vt+1)}, s100
    s_mov_b64 exec, 1
    buffer_store_dword {V(vt)}, off, {SRD(sWS)}, s97
    ''')
    if slot in (1, 2): S(f's_sub_u32 s97, s97, {4*slot}\n buffer_store_dword {V(vt+1)}, off, {SRD(sWS)}, s97')
    S('s_mov_b64 exec, -1')

def chain_role(c, cfg):
    ccfg = dict(cfg.get('chain', {})); ccfg.update(flags=dict(kvq=D_KVQ, kv0=D_KV0, prog=WS_PROG, t2=WS_T2), fail=f'L_cend{c}', done=f'L_cdone{c}', sync=dict(near=D_NEAR, ready=D_READY, kv0=D_KV0))
    plan = C.Plan(c, ccfg)
    S = Stream()
    S(f'L_role{c}:')
    C.prologue(S, plan, ccfg, KARG)
    prof(S, cfg, 2, 8)
    S(f'''
    s_waitcnt vmcnt(0)
    s_barrier
    s_cmp_eq_u32 s{sWv}, 0
    s_cbranch_scc1 L_ch{c}_w0
    s_cmp_eq_u32 s{sWv}, 1
    s_cbranch_scc1 L_ch{c}_w1
    s_cmp_eq_u32 s{sWv}, 2
    s_cbranch_scc1 L_ch{c}_w2
    s_branch L_ch{c}_w3
    ''')
    lines = finalize(S)[0] + ccfg['_ool'] + C.loops(plan, ccfg, f'L_ch{c}')
    E = Stream()
    E(f'L_cdone{c}:\n s_nop 7')
    if c == 1:
        C.final_record(E, ccfg)
        E(f'''
        s_waitcnt vmcnt(0)
        s_barrier
        s_cmp_lg_u32 s{sWv}, 3
        s_cbranch_scc1 L_cexit{c}
        v_mov_b32 v8, 64
        s_mov_b64 exec, 1
        buffer_store_dword v8, off, {SRD(sWS)}, s{C.sProg} sc1
        s_mov_b64 exec, -1
        L_cexit{c}:
        ''')
    prof(E, cfg, 3, 8)
    E(f'L_cend{c}:\n s_waitcnt vmcnt(0)\n s_endpgm')
    return lines + finalize(E)[0]

def worker(cfg):
    sR, sRound, sType, sBlk, sCol, sLd = 47, 48, 49, 58, 59, 60
    S = Stream()
    S(f'''
    L_worker:
    s_load_dwordx16 s[{PT}:{PT+15}], s[0:1], 0
    s_load_dwordx8 s[{PT+16}:{PT+23}], s[0:1], 64
    s_load_dwordx2 s[{G.sO}:{G.sO+1}], s[0:1], {KARG["out"]}
    s_sub_u32 s{sR}, s3, 2
    s_mov_b32 s{G.sO+2}, {2048*2560}
    s_mov_b32 s{G.sO+3}, 0x20000
    s_mov_b32 s{G.sX+3}, 0x20000
    s_mov_b32 s{G.sW0+3}, 0x20000
    s_mov_b32 s{G.sW1+3}, 0x20000
    ''')
    S(f'''
    s_or_b32 s{G.sT0}, s{sR}, s{sId}
    s_or_b32 s{G.sT0}, s{G.sT0}, s{sWv}
    s_cmp_lg_u32 s{G.sT0}, 0
    s_cbranch_scc1 L_noprobe
    v_mov_b32 v8, 0
    s_mov_b64 exec, 1
    s_mov_b32 s50, -1
    s_mov_b32 s51, -1
    s_mov_b32 s52, 0
    s_mov_b32 s53, {C.WS_MB2R + 7168}
    s_mov_b32 s54, {C.WS_MB2R + 8192 + 7168}
    L_probe:
    s_waitcnt lgkmcnt(0)
    s_memtime s[56:57]
    s_waitcnt lgkmcnt(0)
    buffer_store_dword v8, off, {SRD(sWS)}, s53 sc1
    s_waitcnt vmcnt(0)
    s_memtime s[60:61]
    s_waitcnt lgkmcnt(0)
    buffer_store_dword v8, off, {SRD(sWS)}, s54 sc1
    s_waitcnt vmcnt(0)
    s_memtime s[62:63]
    s_waitcnt lgkmcnt(0)
    s_sub_u32 s56, s60, s56
    s_sub_u32 s57, s62, s60
    s_min_u32 s50, s50, s56
    s_min_u32 s51, s51, s57
    s_add_u32 s52, s52, 1
    s_cmp_lt_u32 s52, {cfg.get("nprobe", 3)}
    s_cbranch_scc1 L_probe
    s_cmp_le_u32 s50, s51
    s_cselect_b32 s50, 1, 2
    v_mov_b32 v8, s50
    buffer_store_dword v8, off, {SRD(sDBG)}, 0 offset:{D_NEAR*4} sc1
    s_mov_b64 exec, -1
    L_noprobe:
    s_waitcnt lgkmcnt(0)
    ''')
    G.setup_lane_consts(S)
    mv = lambda d, nm: f's_mov_b32 s{d}, s{ptr(nm)}\n s_mov_b32 s{d+1}, s{ptr(nm)+1}'
    sPT, sPB, sPC = 55, 56, 57
    S(f'''
    s_mov_b32 s{sRound}, 0
    s_mov_b32 s{sType}, 9
    s_mov_b32 s{sBlk}, 0
    s_mov_b32 s{sCol}, 0
    s_mov_b32 s{G.sPD}, s{sWS}
    s_mov_b32 s{G.sPD+1}, s{sWS+1}
    s_mov_b32 s{G.sPD+2}, 0
    s_mov_b32 s{G.sPD+3}, 0x20000
    s_mov_b32 s{G.sPV}, 0
    s_mov_b32 s{G.sPF}, 0
    s_mov_b32 s{G.sP}, 0
    v_mov_b32 {V(G.vP0)}, 0
    v_mov_b32 {V(G.vP1)}, 0
    {mv(G.sX, "Bx")}
    {mv(G.sW0, "Wk")}
    {mv(G.sW1, "Wv")}
    s_mov_b32 s{G.sX+2}, 0
    s_mov_b32 s{G.sW0+2}, 0
    s_mov_b32 s{G.sW1+2}, 0
    ''')
    G.set_strides(S, 0, 0, 0, 0)
    S(f'''
    L_task:
    s_mov_b32 s{sPT}, s{sType}
    s_mov_b32 s{sPB}, s{sBlk}
    s_mov_b32 s{sPC}, s{sCol}
    s_lshl_b32 s50, s{sR}, 5
    s_add_u32 s50, s50, s{sId}
    s_cmp_eq_u32 s{sRound}, 0
    s_cbranch_scc0 L_r1
    s_cmp_eq_u32 s{sR}, 5
    s_cbranch_scc1 L_taskA
    s_mul_i32 s{sCol}, s50, 52429
    s_lshr_b32 s{sCol}, s{sCol}, 18
    s_mul_i32 s51, s{sCol}, 5
    s_sub_u32 s{sBlk}, s50, s51
    s_cmp_lt_u32 s{sBlk}, 2
    s_cbranch_scc1 L_half
    s_sub_u32 s{sBlk}, s{sBlk}, 1
    s_branch L_taskKV
    L_r1:
    s_cmp_eq_u32 s{sRound}, 1
    s_cbranch_scc0 L_r2
    s_cmp_ge_u32 s{sR}, 4
    s_cbranch_scc1 L_r1q
    s_lshr_b32 s{sCol}, s50, 2
    s_and_b32 s{sBlk}, s50, 3
    s_add_u32 s{sBlk}, s{sBlk}, 4
    s_branch L_taskKV
    L_r1q:
    s_sub_u32 s50, s50, 128
    s_branch L_taskQ
    L_r2:
    s_mov_b32 s{sType}, 8
    s_cmp_eq_u32 s{sRound}, 2
    s_cbranch_scc0 L_finish
    s_cmp_ge_u32 s{sR}, 4
    s_cbranch_scc0 L_finish
    s_sub_u32 s50, s50, 64
    s_branch L_taskQ
    L_taskAO:
    s_mov_b32 s{sPT}, 9
    s_mul_i32 s50, s{sR}, 6
    s_add_u32 s50, s50, s{sId}
    s_sub_u32 s50, s50, 26
    s_and_b32 s{sBlk}, s50, 7
    s_lshr_b32 s{sCol}, s50, 3
    s_lshl_b32 s51, s{sBlk}, 2
    ''')
    AT.poll(S, 'L_pt5', D_T5, f's_cmp_eq_u32 s{G.sT0}, 16', 'L_end', soff=51, sleep=16)
    G.setup_lane_consts(S)
    S(f's_mov_b32 s{G.sPF}, 0\n v_mov_b32 {V(G.vP0)}, 0\n v_mov_b32 {V(G.vP1)}, 0')
    S(f'''
    s_mov_b32 s{sType}, 4
    s_mov_b32 s{G.sX}, s{sWS}
    s_mov_b32 s{G.sX+1}, s{sWS+1}
    s_mov_b32 s{G.sX+2}, 0x10000000
    {mv(G.sW0, "Awo")}
    {mv(G.sW1, "Awo")}
    s_mov_b32 s{G.sXo}, {WS_OA}
    s_branch L_taskA2
    L_taskA:
    s_and_b32 s{sBlk}, s{sId}, 7
    s_lshr_b32 s{sCol}, s{sId}, 3
    {mv(G.sX, "Ax")}
    s_mov_b32 s{G.sX+2}, {2048*1280}
    s_mov_b32 s{G.sXo}, 0
    s_cmp_eq_u32 s{sCol}, 3
    s_cbranch_scc1 L_taskAKV
    s_mov_b32 s{sType}, 2
    {mv(G.sW0, "Awq")}
    {mv(G.sW1, "Awq")}
    L_taskA2:
    s_mov_b32 s{G.sW0+2}, {640*1280}
    s_mov_b32 s{G.sW1+2}, {640*1280}
    s_movk_i32 s{sLd}, 1280
    s_lshl_b32 s{G.sW0o}, s{sCol}, 9
    s_add_u32 s{G.sW1o}, s{G.sW0o}, 256
    s_branch L_gemm
    L_taskAKV:
    s_mov_b32 s{sType}, 3
    {mv(G.sW0, "Awk")}
    {mv(G.sW1, "Awv")}
    s_mov_b32 s{G.sW0+2}, {640*40}
    s_mov_b32 s{G.sW1+2}, {640*40}
    s_movk_i32 s{sLd}, 40
    s_mov_b32 s{G.sW0o}, 0
    s_mov_b32 s{G.sW1o}, 0
    s_branch L_gemm
    L_taskQ:
    s_mov_b32 s{sType}, 1
    s_and_b32 s{sBlk}, s50, 7
    s_lshr_b32 s{sCol}, s50, 3
    {mv(G.sW0, "Wq")}
    {mv(G.sW1, "Wq")}
    s_lshl_b32 s{G.sW0o}, s{sCol}, 9
    s_add_u32 s{G.sW1o}, s{G.sW0o}, 256
    s_branch L_taskB
    L_taskKV:
    s_mov_b32 s{sType}, 0
    {mv(G.sW0, "Wk")}
    {mv(G.sW1, "Wv")}
    s_lshl_b32 s{G.sW0o}, s{sCol}, 8
    s_mov_b32 s{G.sW1o}, s{G.sW0o}
    L_taskB:
    {mv(G.sX, "Bx")}
    s_mov_b32 s{G.sX+2}, {2048*1280}
    s_mov_b32 s{G.sXo}, 0
    s_mov_b32 s{G.sW0+2}, {640*8192}
    s_mov_b32 s{G.sW1+2}, {640*8192}
    s_movk_i32 s{sLd}, 8192
    L_gemm:
    s_mul_i32 s50, s{sBlk}, {256*1280}
    s_add_u32 s{G.sXo}, s{G.sXo}, s50
    ''')
    G.setup_task(S, sLd)
    if cfg.get('prof'):
        S(f's_cmp_eq_u32 s{sRound}, 0\n s_cbranch_scc0 L_pfs'); prof(S, cfg, 7); S('L_pfs:')
    G.first_dma(S)
    S(f'''
    L_finish:
    s_cmp_eq_u32 s{sPT}, 9
    s_cbranch_scc1 L_go
    s_lshl_b32 s53, s{sPB}, 3
    s_lshl_b32 s54, s{sWv}, 1
    s_add_u32 s53, s53, s54
    s_cmp_eq_u32 s{sPT}, 3
    s_cbranch_scc1 L_fin_akv
    s_mov_b32 s{G.sPD}, s{sWS}
    s_mov_b32 s{G.sPD+1}, s{sWS+1}
    s_mov_b32 s{G.sPD+2}, 0x10000000
    s_cmp_ge_u32 s{sPT}, 2
    s_cbranch_scc1 L_fin_rows
    ''')
    G.frag_addr_T(S, G.vP0); G.frag_addr_N(S, G.vP1)
    S(f'''
    s_lshl_b32 s54, s{sPC}, 14
    s_lshl_b32 s{G.sPF}, s{sPB}, 2
    s_add_u32 s{G.sPF}, s{G.sPF}, {D_KVQ*4}
    s_cmp_eq_u32 s{sPT}, 0
    s_cbranch_scc0 L_fin_q
    s_lshl_b32 s{G.sP}, s53, 19
    s_add_u32 s{G.sP}, s{G.sP}, {WS_KVX}
    s_mov_b32 s{G.sPV}, 1
    ''')
    G.set_strides(S, 512, 4096, 32*16384, 2048)
    S(f'''
    s_branch L_fin_frag
    L_fin_q:
    v_mov_b32 {V(G.vP1)}, {V(G.vP0)}
    s_lshl_b32 s{G.sP}, s53, 18
    s_add_u32 s{G.sP}, s{G.sP}, {WS_QX}
    s_mov_b32 s{G.sPV}, 0x10000
    ''')
    G.set_strides(S, 512, 2048, 32*8192, 8192)
    S(f'L_fin_frag:\n s_add_u32 s{G.sP}, s{G.sP}, s54')
    G.pack_all(S)
    S(f'''
    s_branch L_packed
    L_fin_rows:
    s_lshl_b32 s54, s{sPC}, 9
    s_cmp_eq_u32 s{sPT}, 2
    s_cbranch_scc0 L_fin_out
    s_movk_i32 s51, 1280
    s_mov_b32 s{G.sE1}, {f2u(20**-0.5*math.log2(math.e))}
    s_add_u32 s54, s54, {WS_QA}
    s_mov_b32 s{G.sPV}, 1
    s_movk_i32 s{G.sPF}, {D_APROJ*4}
    ''')
    G.set_strides(S, 16*1280, 64, 32*1280, 256)
    S(f'''
    s_branch L_fin_rows2
    L_fin_out:
    s_movk_i32 s51, 2560
    s_mov_b32 s{G.sE1}, 1.0
    s_mov_b32 s{G.sPD}, s{G.sO}
    s_mov_b32 s{G.sPD+1}, s{G.sO+1}
    s_mov_b32 s{G.sPD+2}, s{G.sO+2}
    s_mov_b32 s{G.sPV}, 0
    ''')
    G.set_strides(S, 16*2560, 64, 32*2560, 256)
    S(f'L_fin_rows2:\n s_mul_i32 s{G.sP}, s53, s51\n s_lshl_b32 s{G.sP}, s{G.sP}, 5\n s_add_u32 s{G.sP}, s{G.sP}, s54')
    G.rows_addr(S, G.vP0, 51)
    S(f'''
    v_mov_b32 {V(G.vP1)}, {V(G.vP0)}
    s_cmp_eq_u32 s{sPC}, 2
    s_cbranch_scc0 L_fin_rows3
    v_mov_b32 {V(G.vP1)}, 0x7ff00000
    L_fin_rows3:
    ''')
    G.pack_all(S, scale=G.sE1, rows=True)
    S(f'''
    L_packed:
    s_cmp_eq_u32 s{sType}, 8
    s_cbranch_scc1 L_flush
    s_cmp_eq_u32 s{sPT}, 2
    s_cbranch_scc0 L_go
    L_flush:
    ''')
    G.flush(S, 'fl')
    S('s_branch L_go')
    S(f'L_fin_akv:\n s_lshl_b32 s{G.sE0}, s53, 12\n s_add_u32 s{G.sE0}, s{G.sE0}, {WS_KVA}')
    G.epi_akv(S)
    AT.signal(S, D_APROJ, '1', uid='akv')
    S('L_go:')
    if cfg.get('prof'):
        for r in range(1, 5):
            S(f's_cmp_eq_u32 s{sRound}, {r}\n s_cbranch_scc0 L_pf{r}'); prof(S, cfg, r); S(f'L_pf{r}:')
    S(f'''
    s_add_u32 s{sRound}, s{sRound}, 1
    s_cmp_eq_u32 s{sType}, 8
    s_cbranch_scc1 L_after
    s_cmp_eq_u32 s{sType}, 0
    s_cbranch_scc1 L_coreTN
    s_cmp_eq_u32 s{sType}, 3
    s_cbranch_scc1 L_coreTN
    ''')
    lines = finalize(S)[0]
    lines += G.core2('TT', 'gtt') + ['s_branch L_task', 'L_coreTN:'] + G.core2('TN', 'gtn')
    E = Stream()
    if cfg.get('prof'):
        E(f's_cmp_eq_u32 s{sRound}, 1\n s_cbranch_scc0 L_pfc'); prof(E, cfg, 8); E('L_pfc:')
    E(f'''
    s_branch L_task
    L_half:
    {mv(G.sW0, "Wk")}
    {mv(G.sW1, "Wv")}
    {mv(G.sX, "Bx")}
    s_mov_b32 s{G.sX+2}, {2048*1280}
    s_mov_b32 s{G.sW0+2}, {640*8192}
    s_mov_b32 s{G.sW1+2}, {640*8192}
    s_movk_i32 s{sLd}, 8192
    s_mov_b32 s52, {32*1280}
    L_half2:
    s_lshl_b32 s{G.sW0o}, s{sCol}, 8
    s_mov_b32 s{G.sW1o}, s{G.sW0o}
    s_mul_i32 s{G.sXo}, s{sBlk}, {128*1280}
    s_lshl_b32 s53, s{sBlk}, 2
    s_add_u32 s53, s53, s{sWv}
    s_lshl_b32 s{G.sE0}, s53, 19
    s_lshl_b32 s54, s{sCol}, 14
    s_add_u32 s{G.sE0}, s{G.sE0}, s54
    s_add_u32 s{G.sE0}, s{G.sE0}, {WS_KVX}
    ''')
    G.setup_task(E, sLd, 52)
    lines += finalize(E)[0] + G.core_half('L_gh', WS_KVX)
    E = Stream()
    E(f's_cmp_eq_u32 s{sBlk}, 0\n s_cselect_b32 s51, {D_KV0*4}, {D_KVQ*4}')
    AT.signal(E, 0, '1', soff=51, uid='half')
    if cfg.get('prof'):
        prof(E, cfg, 9)
    E(f'''
    s_mov_b32 s{sType}, 9
    s_mov_b32 s{sRound}, 1
    s_branch L_task
    L_after:
    s_lshl_b32 s50, s{sR}, 5
    s_add_u32 s50, s50, s{sId}
    s_cmp_eq_u32 s{sR}, 4
    s_cbranch_scc1 L_doT2
    s_cmp_eq_u32 s{sR}, 5
    s_cbranch_scc1 L_doT3
    s_cmp_eq_u32 s{sPT}, 4
    s_cbranch_scc1 L_wend
    ''')
    E('L_doT5:')
    AT.poll(E, 'L_pap', D_APROJ, f's_cmp_eq_u32 s{G.sT0}, 32', 'L_end', sleep=16)
    E(f's_lshl_b32 s55, s50, 4\n s_lshl_b32 s56, s{sWv}, 2\n s_add_u32 s55, s55, s56')
    lines += finalize(E)[0]
    lines += AT.t5(55, **cfg.get('t5', {}))
    E = Stream()
    E(f's_lshr_b32 s51, s55, 8\n s_lshl_b32 s51, s51, 2')
    AT.signal(E, D_T5, '1', soff=51, uid='t5')
    prof(E, cfg, 5)
    E(f'''
    s_cmp_ge_u32 s{sId}, 26
    s_cbranch_scc1 L_taskAO
    L_doT3:
    s_mov_b32 s{sCol}, s{sId}
    s_add_u32 s{sBlk}, s{sR}, 1
    s_cmp_eq_u32 s{sR}, 5
    s_cselect_b32 s{sBlk}, 0, s{sBlk}
    s_cmp_lt_u32 s{sId}, 20
    s_cbranch_scc1 L_doT3b
    s_cmp_eq_u32 s{sR}, 5
    s_cbranch_scc1 L_wend
    s_cmp_ge_u32 s{sId}, 25
    s_cbranch_scc1 L_wend
    s_mul_i32 s{sCol}, s{sR}, 5
    s_add_u32 s{sCol}, s{sCol}, s{sId}
    s_sub_u32 s{sCol}, s{sCol}, 20
    s_mov_b32 s{sBlk}, 5
    L_doT3b:
    {mv(G.sW0, "Wo")}
    s_mov_b32 s{G.sW0+2}, {4096*1280}
    s_mov_b32 s{sSpin}, 0
    ''')
    AT.poll(E, 'L_prd3', D_READY, f's_cmp_eq_u32 s{G.sT0}, 64', 'L_end', sleep=16)
    lines += finalize(E)[0]
    lines += AT.t3(sBlk, sCol, 'L_end', first=cfg.get('t3first', 18))
    E = Stream()
    E('L_wend:')
    prof(E, cfg, 6)
    E(f's_waitcnt vmcnt(0)\n s_endpgm\n L_doT2:\n s_mov_b32 s{sSpin}, 0')
    AT.poll(E, 'L_prd2', D_READY, f's_cmp_eq_u32 s{G.sT0}, 64', 'L_end', sleep=16)
    lines += finalize(E)[0]
    lines += AT.t2(sId, 'L_end')
    E = Stream()
    prof(E, cfg, 6)
    E('s_waitcnt vmcnt(0)\n s_endpgm')
    return lines + finalize(E)[0]

BEST = dict(vdef=4, d_g1=220, pipe3=80, pipe1=60, ackwait=None, d_h1=[40, 80, 120], chk2_at0=22, bar2_at0=31, chk2_at1=12, bar2_at1=20, rdy_ahead=5)
def gen(cfg):
    cfg = dict(cfg); cfg.setdefault('chain', BEST)
    S = Stream(); entry(S, cfg)
    lines = finalize(S)[0] + ['L_end:', 's_endpgm']
    lines += chain_role(0, cfg) + chain_role(1, cfg) + [l.replace('L_end', 'L_wend2') for l in worker(cfg)] + ['L_wend2:', 's_endpgm']
    ref = open('concat_heads__grouped_kv_mqa__memory_aug_recurrent_mem_tr__prompt.s.ref').read().split('\n') if not cfg.get('nohdr') else []
    head = [l for l in ref if l.startswith(';') and '@launch' not in l][:16]
    txt = '\n'.join(head + ['; @launch grid=(256,1,1) block=(256,1,1) lds=163840']) + '\n' + header(NAME)
    txt += '\n'.join(l if l.endswith(':') else '    ' + l for l in lines) + '\n' + descriptor(NAME)
    return txt
if __name__ == '__main__':
    out = sys.argv[1] if len(sys.argv) > 1 else 'main.s'
    open(out, 'w').write(gen({}))
```

```python
import sys, math
from asmlib import header, descriptor
from sched import Stream, finalize
import chain4 as C
import gemm as G
import attn as AT
from chain4 import V, SRD, SP, f2u
from layout import *
NAME = 'concat_heads__grouped_kv_mqa__memory_aug_recurrent_mem_tr__prompt_kernel'
sWS, sDBG, sWv, sId, sSpin = 4, 8, 17, 16, 19
PT = 64
ptr = lambda nm: PT + KARG[nm] // 4

def entry(S, cfg):
    S(f'''
    s_cmp_ge_u32 s2, 256
    s_cbranch_scc1 L_end
    s_load_dwordx2 s[4:5], s[0:1], {KARG["ws"]}
    s_load_dwordx2 s[8:9], s[0:1], {KARG["dbg"]}
    s_getreg_b32 s3, hwreg(HW_REG_XCC_ID, 0, 4)
    v_lshrrev_b32 v1, 6, v0
    v_and_b32 v0, 63, v0
    v_readfirstlane_b32 s{sWv}, v1
    s_mov_b32 s6, 0x10000000
    s_mov_b32 s7, 0x20000
    s_mov_b32 s10, 256
    s_mov_b32 s11, 0x20000
    s_mov_b32 s{sSpin}, 0
    s_and_b32 s3, s3, 7
    s_cmp_lt_u32 s3, 2
    s_cselect_b32 s29, {D_TICKETC}, {D_TICKET}
    s_add_u32 s29, s29, s3
    s_lshl_b32 s29, s29, 2
    ''')
    if cfg.get('prof') or cfg.get('dprof'): S('s_memrealtime s[100:101]')
    S(f'''
    s_waitcnt lgkmcnt(0)
    v_mov_b32 v4, {C.L_MISC}
    s_cmp_lg_u32 s{sWv}, 0
    s_cbranch_scc1 L_noticket
    v_mov_b32 v3, 1
    s_mov_b64 exec, 1
    buffer_atomic_add v3, off, s[8:11], s29 sc0
    s_waitcnt vmcnt(0)
    ds_write_b32 v4, v3
    s_waitcnt lgkmcnt(0)
    s_mov_b64 exec, -1
    L_noticket:
    s_barrier
    ds_read_b32 v3, v4
    s_waitcnt lgkmcnt(0)
    v_readfirstlane_b32 s{sId}, v3
    s_barrier
    s_cmp_ge_u32 s{sId}, 32
    s_cbranch_scc1 L_end
    s_cmp_eq_u32 s3, 0
    s_cbranch_scc1 L_role0
    s_cmp_eq_u32 s3, 1
    s_cbranch_scc1 L_role1
    s_branch L_worker
    ''')

def dstamp(S, cfg, word, vt, inv=False, src=None):
    if not cfg.get('dprof'): return
    if src is None: S('s_memrealtime s[98:99]\n s_waitcnt lgkmcnt(0)')
    S(f'''
    {'s_not_b32 s98, s%d' % (src or 98) if inv else 's_nop 0'}
    v_mov_b32 {V(vt)}, s98
    s_mov_b64 exec, 1
    buffer_atomic_umax {V(vt)}, off, {SRD(sDBG)}, 0 offset:{word*4}
    s_mov_b64 exec, -1
    ''')

def prof(S, cfg, slot, vt=250):
    if not cfg.get('prof'): return
    S(f'''
    s_memrealtime s[98:99]
    s_lshl_b32 s97, s3, 5
    s_add_u32 s97, s97, s{sId}
    s_lshl_b32 s97, s97, 2
    s_add_u32 s97, s97, s{sWv}
    s_lshl_b32 s97, s97, 6
    s_add_u32 s97, s97, {0x6000000 + slot*4}
    s_waitcnt lgkmcnt(0)
    v_mov_b32 {V(vt)}, s98
    v_mov_b32 {V(vt+1)}, s100
    s_mov_b64 exec, 1
    buffer_store_dword {V(vt)}, off, {SRD(sWS)}, s97
    ''')
    if slot in (1, 2): S(f's_sub_u32 s97, s97, {4*slot}\n buffer_store_dword {V(vt+1)}, off, {SRD(sWS)}, s97')
    S('s_mov_b64 exec, -1')

def chain_role(c, cfg):
    ccfg = dict(cfg.get('chain', {})); ccfg.update(flags=dict(kvq=D_KVQ, kv0=D_KV0, prog=WS_PROG, t2=WS_T2), fail=f'L_cend{c}', done=f'L_cdone{c}', sync=dict(near=D_NEAR, ready=D_READY, kv0=D_KV0))
    plan = C.Plan(c, ccfg)
    S = Stream()
    S(f'L_role{c}:')
    C.prologue(S, plan, ccfg, KARG)
    prof(S, cfg, 2, 8); dstamp(S, cfg, 11, 8)
    S(f'''
    s_waitcnt vmcnt(0)
    s_barrier
    s_cmp_eq_u32 s{sWv}, 0
    s_cbranch_scc1 L_ch{c}_w0
    s_cmp_eq_u32 s{sWv}, 1
    s_cbranch_scc1 L_ch{c}_w1
    s_cmp_eq_u32 s{sWv}, 2
    s_cbranch_scc1 L_ch{c}_w2
    s_branch L_ch{c}_w3
    ''')
    lines = finalize(S)[0] + ccfg['_ool'] + C.loops(plan, ccfg, f'L_ch{c}')
    E = Stream()
    E(f'L_cdone{c}:\n s_nop 7')
    if c == 1:
        C.final_record(E, ccfg)
        E(f'''
        s_waitcnt vmcnt(0)
        s_barrier
        s_cmp_lg_u32 s{sWv}, 3
        s_cbranch_scc1 L_cexit{c}
        v_mov_b32 v8, 64
        s_mov_b64 exec, 1
        buffer_store_dword v8, off, {SRD(sWS)}, s{C.sProg} sc1
        s_mov_b64 exec, -1
        L_cexit{c}:
        ''')
    prof(E, cfg, 3, 8); dstamp(E, cfg, 12, 8); dstamp(E, cfg, 10, 8, True, 100)
    E(f'L_cend{c}:\n s_waitcnt vmcnt(0)\n s_endpgm')
    return lines + finalize(E)[0]

def worker(cfg):
    sR, sRound, sType, sBlk, sCol, sLd = 47, 48, 49, 58, 59, 60
    S = Stream()
    S(f'''
    L_worker:
    s_load_dwordx16 s[{PT}:{PT+15}], s[0:1], 0
    s_load_dwordx8 s[{PT+16}:{PT+23}], s[0:1], 64
    s_load_dwordx2 s[{G.sO}:{G.sO+1}], s[0:1], {KARG["out"]}
    s_sub_u32 s{sR}, s3, 2
    s_mov_b32 s{G.sO+2}, {2048*2560}
    s_mov_b32 s{G.sO+3}, 0x20000
    s_mov_b32 s{G.sX+3}, 0x20000
    s_mov_b32 s{G.sW0+3}, 0x20000
    s_mov_b32 s{G.sW1+3}, 0x20000
    ''')
    S(f'''
    s_or_b32 s{G.sT0}, s{sR}, s{sId}
    s_or_b32 s{G.sT0}, s{G.sT0}, s{sWv}
    s_cmp_lg_u32 s{G.sT0}, 0
    s_cbranch_scc1 L_noprobe
    v_mov_b32 v8, 0
    s_mov_b64 exec, 1
    s_mov_b32 s50, -1
    s_mov_b32 s51, -1
    s_mov_b32 s52, 0
    s_mov_b32 s53, {C.WS_MB2R + 7168}
    s_mov_b32 s54, {C.WS_MB2R + 8192 + 7168}
    L_probe:
    s_waitcnt lgkmcnt(0)
    s_memtime s[56:57]
    s_waitcnt lgkmcnt(0)
    buffer_store_dword v8, off, {SRD(sWS)}, s53 sc1
    s_waitcnt vmcnt(0)
    s_memtime s[60:61]
    s_waitcnt lgkmcnt(0)
    buffer_store_dword v8, off, {SRD(sWS)}, s54 sc1
    s_waitcnt vmcnt(0)
    s_memtime s[62:63]
    s_waitcnt lgkmcnt(0)
    s_sub_u32 s56, s60, s56
    s_sub_u32 s57, s62, s60
    s_min_u32 s50, s50, s56
    s_min_u32 s51, s51, s57
    s_add_u32 s52, s52, 1
    s_cmp_lt_u32 s52, {cfg.get("nprobe", 3)}
    s_cbranch_scc1 L_probe
    s_cmp_le_u32 s50, s51
    s_cselect_b32 s50, 1, 2
    v_mov_b32 v8, s50
    buffer_store_dword v8, off, {SRD(sDBG)}, 0 offset:{D_NEAR*4} sc1
    s_mov_b64 exec, -1
    L_noprobe:
    s_waitcnt lgkmcnt(0)
    ''')
    G.setup_lane_consts(S)
    mv = lambda d, nm: f's_mov_b32 s{d}, s{ptr(nm)}\n s_mov_b32 s{d+1}, s{ptr(nm)+1}'
    sPT, sPB, sPC = 55, 56, 57
    S(f'''
    s_mov_b32 s{sRound}, 0
    s_mov_b32 s{sType}, 9
    s_mov_b32 s{sBlk}, 0
    s_mov_b32 s{sCol}, 0
    s_mov_b32 s{G.sPD}, s{sWS}
    s_mov_b32 s{G.sPD+1}, s{sWS+1}
    s_mov_b32 s{G.sPD+2}, 0
    s_mov_b32 s{G.sPD+3}, 0x20000
    s_mov_b32 s{G.sPV}, 0
    s_mov_b32 s{G.sPF}, 0
    s_mov_b32 s{G.sP}, 0
    v_mov_b32 {V(G.vP0)}, 0
    v_mov_b32 {V(G.vP1)}, 0
    {mv(G.sX, "Bx")}
    {mv(G.sW0, "Wk")}
    {mv(G.sW1, "Wv")}
    s_mov_b32 s{G.sX+2}, 0
    s_mov_b32 s{G.sW0+2}, 0
    s_mov_b32 s{G.sW1+2}, 0
    ''')
    G.set_strides(S, 0, 0, 0, 0)
    S(f'''
    L_task:
    s_mov_b32 s{sPT}, s{sType}
    s_mov_b32 s{sPB}, s{sBlk}
    s_mov_b32 s{sPC}, s{sCol}
    s_lshl_b32 s50, s{sR}, 5
    s_add_u32 s50, s50, s{sId}
    s_cmp_eq_u32 s{sRound}, 0
    s_cbranch_scc0 L_r1
    s_cmp_eq_u32 s{sR}, 5
    s_cbranch_scc1 L_taskA
    s_mul_i32 s{sCol}, s50, 52429
    s_lshr_b32 s{sCol}, s{sCol}, 18
    s_mul_i32 s51, s{sCol}, 5
    s_sub_u32 s{sBlk}, s50, s51
    s_cmp_lt_u32 s{sBlk}, 2
    s_cbranch_scc1 L_half
    s_sub_u32 s{sBlk}, s{sBlk}, 1
    s_branch L_taskKV
    L_r1:
    s_cmp_eq_u32 s{sRound}, 1
    s_cbranch_scc0 L_r2
    s_cmp_ge_u32 s{sR}, 4
    s_cbranch_scc1 L_r1q
    s_lshr_b32 s{sCol}, s50, 2
    s_and_b32 s{sBlk}, s50, 3
    s_add_u32 s{sBlk}, s{sBlk}, 4
    s_branch L_taskKV
    L_r1q:
    s_sub_u32 s50, s50, 128
    s_branch L_taskQ
    L_r2:
    s_mov_b32 s{sType}, 8
    s_cmp_eq_u32 s{sRound}, 2
    s_cbranch_scc0 L_finish
    s_cmp_ge_u32 s{sR}, 4
    s_cbranch_scc0 L_finish
    s_sub_u32 s50, s50, 64
    s_branch L_taskQ
    L_taskAO:
    s_mov_b32 s{sPT}, 9
    s_mul_i32 s50, s{sR}, 6
    s_add_u32 s50, s50, s{sId}
    s_sub_u32 s50, s50, 26
    s_and_b32 s{sBlk}, s50, 7
    s_lshr_b32 s{sCol}, s50, 3
    s_lshl_b32 s51, s{sBlk}, 2
    ''')
    AT.poll(S, 'L_pt5', D_T5, f's_cmp_eq_u32 s{G.sT0}, 16', 'L_end', soff=51, sleep=16)
    G.setup_lane_consts(S)
    S(f's_mov_b32 s{G.sPF}, 0\n v_mov_b32 {V(G.vP0)}, 0\n v_mov_b32 {V(G.vP1)}, 0')
    S(f'''
    s_mov_b32 s{sType}, 4
    s_mov_b32 s{G.sX}, s{sWS}
    s_mov_b32 s{G.sX+1}, s{sWS+1}
    s_mov_b32 s{G.sX+2}, 0x10000000
    {mv(G.sW0, "Awo")}
    {mv(G.sW1, "Awo")}
    s_mov_b32 s{G.sXo}, {WS_OA}
    s_branch L_taskA2
    L_taskA:
    s_and_b32 s{sBlk}, s{sId}, 7
    s_lshr_b32 s{sCol}, s{sId}, 3
    {mv(G.sX, "Ax")}
    s_mov_b32 s{G.sX+2}, {2048*1280}
    s_mov_b32 s{G.sXo}, 0
    s_cmp_eq_u32 s{sCol}, 3
    s_cbranch_scc1 L_taskAKV
    s_mov_b32 s{sType}, 2
    {mv(G.sW0, "Awq")}
    {mv(G.sW1, "Awq")}
    L_taskA2:
    s_mov_b32 s{G.sW0+2}, {640*1280}
    s_mov_b32 s{G.sW1+2}, {640*1280}
    s_movk_i32 s{sLd}, 1280
    s_lshl_b32 s{G.sW0o}, s{sCol}, 9
    s_add_u32 s{G.sW1o}, s{G.sW0o}, 256
    s_branch L_gemm
    L_taskAKV:
    s_mov_b32 s{sType}, 3
    {mv(G.sW0, "Awk")}
    {mv(G.sW1, "Awv")}
    s_mov_b32 s{G.sW0+2}, {640*40}
    s_mov_b32 s{G.sW1+2}, {640*40}
    s_movk_i32 s{sLd}, 40
    s_mov_b32 s{G.sW0o}, 0
    s_mov_b32 s{G.sW1o}, 0
    s_branch L_gemm
    L_taskQ:
    s_mov_b32 s{sType}, 1
    s_and_b32 s{sBlk}, s50, 7
    s_lshr_b32 s{sCol}, s50, 3
    {mv(G.sW0, "Wq")}
    {mv(G.sW1, "Wq")}
    s_lshl_b32 s{G.sW0o}, s{sCol}, 9
    s_add_u32 s{G.sW1o}, s{G.sW0o}, 256
    s_branch L_taskB
    L_taskKV:
    s_mov_b32 s{sType}, 0
    {mv(G.sW0, "Wk")}
    {mv(G.sW1, "Wv")}
    s_lshl_b32 s{G.sW0o}, s{sCol}, 8
    s_mov_b32 s{G.sW1o}, s{G.sW0o}
    L_taskB:
    {mv(G.sX, "Bx")}
    s_mov_b32 s{G.sX+2}, {2048*1280}
    s_mov_b32 s{G.sXo}, 0
    s_mov_b32 s{G.sW0+2}, {640*8192}
    s_mov_b32 s{G.sW1+2}, {640*8192}
    s_movk_i32 s{sLd}, 8192
    L_gemm:
    s_mul_i32 s50, s{sBlk}, {256*1280}
    s_add_u32 s{G.sXo}, s{G.sXo}, s50
    ''')
    G.setup_task(S, sLd)
    if cfg.get('prof'):
        S(f's_cmp_eq_u32 s{sRound}, 0\n s_cbranch_scc0 L_pfs'); prof(S, cfg, 7); S('L_pfs:')
    G.first_dma(S)
    S(f'''
    L_finish:
    s_cmp_eq_u32 s{sPT}, 9
    s_cbranch_scc1 L_go
    s_lshl_b32 s53, s{sPB}, 3
    s_lshl_b32 s54, s{sWv}, 1
    s_add_u32 s53, s53, s54
    s_cmp_eq_u32 s{sPT}, 3
    s_cbranch_scc1 L_fin_akv
    s_mov_b32 s{G.sPD}, s{sWS}
    s_mov_b32 s{G.sPD+1}, s{sWS+1}
    s_mov_b32 s{G.sPD+2}, 0x10000000
    s_cmp_ge_u32 s{sPT}, 2
    s_cbranch_scc1 L_fin_rows
    ''')
    G.frag_addr_T(S, G.vP0); G.frag_addr_N(S, G.vP1)
    S(f'''
    s_lshl_b32 s54, s{sPC}, 14
    s_lshl_b32 s{G.sPF}, s{sPB}, 2
    s_add_u32 s{G.sPF}, s{G.sPF}, {D_KVQ*4}
    s_cmp_eq_u32 s{sPT}, 0
    s_cbranch_scc0 L_fin_q
    s_lshl_b32 s{G.sP}, s53, 19
    s_add_u32 s{G.sP}, s{G.sP}, {WS_KVX}
    s_mov_b32 s{G.sPV}, 1
    ''')
    G.set_strides(S, 512, 4096, 32*16384, 2048)
    S(f'''
    s_branch L_fin_frag
    L_fin_q:
    v_mov_b32 {V(G.vP1)}, {V(G.vP0)}
    s_lshl_b32 s{G.sP}, s53, 18
    s_add_u32 s{G.sP}, s{G.sP}, {WS_QX}
    s_mov_b32 s{G.sPV}, 0x10000
    ''')
    G.set_strides(S, 512, 2048, 32*8192, 8192)
    S(f'L_fin_frag:\n s_add_u32 s{G.sP}, s{G.sP}, s54')
    G.pack_all(S)
    S(f'''
    s_branch L_packed
    L_fin_rows:
    s_lshl_b32 s54, s{sPC}, 9
    s_cmp_eq_u32 s{sPT}, 2
    s_cbranch_scc0 L_fin_out
    s_movk_i32 s51, 1280
    s_mov_b32 s{G.sE1}, {f2u(20**-0.5*math.log2(math.e))}
    s_add_u32 s54, s54, {WS_QA}
    s_mov_b32 s{G.sPV}, 1
    s_movk_i32 s{G.sPF}, {D_APROJ*4}
    ''')
    G.set_strides(S, 16*1280, 64, 32*1280, 256)
    S(f'''
    s_branch L_fin_rows2
    L_fin_out:
    s_movk_i32 s51, 2560
    s_mov_b32 s{G.sE1}, 1.0
    s_mov_b32 s{G.sPD}, s{G.sO}
    s_mov_b32 s{G.sPD+1}, s{G.sO+1}
    s_mov_b32 s{G.sPD+2}, s{G.sO+2}
    s_mov_b32 s{G.sPV}, 0
    ''')
    G.set_strides(S, 16*2560, 64, 32*2560, 256)
    S(f'L_fin_rows2:\n s_mul_i32 s{G.sP}, s53, s51\n s_lshl_b32 s{G.sP}, s{G.sP}, 5\n s_add_u32 s{G.sP}, s{G.sP}, s54')
    G.rows_addr(S, G.vP0, 51)
    S(f'''
    v_mov_b32 {V(G.vP1)}, {V(G.vP0)}
    s_cmp_eq_u32 s{sPC}, 2
    s_cbranch_scc0 L_fin_rows3
    v_mov_b32 {V(G.vP1)}, 0x7ff00000
    L_fin_rows3:
    ''')
    G.pack_all(S, scale=G.sE1, rows=True)
    S(f'''
    L_packed:
    s_cmp_eq_u32 s{sType}, 8
    s_cbranch_scc1 L_flush
    s_cmp_eq_u32 s{sPT}, 2
    s_cbranch_scc0 L_go
    L_flush:
    ''')
    G.flush(S, 'fl')
    S('s_branch L_go')
    S(f'L_fin_akv:\n s_lshl_b32 s{G.sE0}, s53, 12\n s_add_u32 s{G.sE0}, s{G.sE0}, {WS_KVA}')
    G.epi_akv(S)
    AT.signal(S, D_APROJ, '1', uid='akv')
    S('L_go:')
    if cfg.get('prof'):
        for r in range(1, 5):
            S(f's_cmp_eq_u32 s{sRound}, {r}\n s_cbranch_scc0 L_pf{r}'); prof(S, cfg, r); S(f'L_pf{r}:')
    S(f'''
    s_add_u32 s{sRound}, s{sRound}, 1
    s_cmp_eq_u32 s{sType}, 8
    s_cbranch_scc1 L_after
    s_cmp_eq_u32 s{sType}, 0
    s_cbranch_scc1 L_coreTN
    s_cmp_eq_u32 s{sType}, 3
    s_cbranch_scc1 L_coreTN
    ''')
    lines = finalize(S)[0]
    lines += G.core2('TT', 'gtt') + ['s_branch L_task', 'L_coreTN:'] + G.core2('TN', 'gtn')
    E = Stream()
    if cfg.get('prof'):
        E(f's_cmp_eq_u32 s{sRound}, 1\n s_cbranch_scc0 L_pfc'); prof(E, cfg, 8); E('L_pfc:')
    E(f'''
    s_branch L_task
    L_half:
    {mv(G.sW0, "Wk")}
    {mv(G.sW1, "Wv")}
    {mv(G.sX, "Bx")}
    s_mov_b32 s{G.sX+2}, {2048*1280}
    s_mov_b32 s{G.sW0+2}, {640*8192}
    s_mov_b32 s{G.sW1+2}, {640*8192}
    s_movk_i32 s{sLd}, 8192
    s_mov_b32 s52, {32*1280}
    L_half2:
    s_lshl_b32 s{G.sW0o}, s{sCol}, 8
    s_mov_b32 s{G.sW1o}, s{G.sW0o}
    s_mul_i32 s{G.sXo}, s{sBlk}, {128*1280}
    s_lshl_b32 s53, s{sBlk}, 2
    s_add_u32 s53, s53, s{sWv}
    s_lshl_b32 s{G.sE0}, s53, 19
    s_lshl_b32 s54, s{sCol}, 14
    s_add_u32 s{G.sE0}, s{G.sE0}, s54
    s_add_u32 s{G.sE0}, s{G.sE0}, {WS_KVX}
    ''')
    G.setup_task(E, sLd, 52)
    lines += finalize(E)[0] + G.core_half('L_gh', WS_KVX)
    E = Stream()
    E(f's_cmp_eq_u32 s{sBlk}, 0\n s_cselect_b32 s51, {D_KV0}, {D_KVQ}\n s_lshl_b32 s51, s51, 2')
    AT.signal(E, 0, '1', soff=51, uid='half')
    if cfg.get('prof'):
        prof(E, cfg, 9)
    dstamp(E, cfg, 15, 250)
    E(f'''
    s_mov_b32 s{sType}, 9
    s_mov_b32 s{sRound}, 1
    s_branch L_task
    L_after:
    s_lshl_b32 s50, s{sR}, 5
    s_add_u32 s50, s50, s{sId}
    s_cmp_eq_u32 s{sR}, 4
    s_cbranch_scc1 L_doT2
    s_cmp_eq_u32 s{sR}, 5
    s_cbranch_scc1 L_doT3
    s_cmp_eq_u32 s{sPT}, 4
    s_cbranch_scc1 L_wend
    ''')
    E('L_doT5:')
    AT.poll(E, 'L_pap', D_APROJ, f's_cmp_eq_u32 s{G.sT0}, 32', 'L_end', sleep=16)
    E(f's_lshl_b32 s55, s50, 4\n s_lshl_b32 s56, s{sWv}, 2\n s_add_u32 s55, s55, s56')
    lines += finalize(E)[0]
    lines += AT.t5(55, **cfg.get('t5', {}))
    E = Stream()
    E(f's_lshr_b32 s51, s55, 8\n s_lshl_b32 s51, s51, 2')
    AT.signal(E, D_T5, '1', soff=51, uid='t5')
    prof(E, cfg, 5); dstamp(E, cfg, 14, 250)
    E(f'''
    s_cmp_ge_u32 s{sId}, 26
    s_cbranch_scc1 L_taskAO
    L_doT3:
    s_mov_b32 s{sCol}, s{sId}
    s_add_u32 s{sBlk}, s{sR}, 1
    s_cmp_eq_u32 s{sR}, 5
    s_cselect_b32 s{sBlk}, 0, s{sBlk}
    s_cmp_lt_u32 s{sId}, 20
    s_cbranch_scc1 L_doT3b
    s_cmp_eq_u32 s{sR}, 5
    s_cbranch_scc1 L_wend
    s_cmp_ge_u32 s{sId}, 25
    s_cbranch_scc1 L_wend
    s_mul_i32 s{sCol}, s{sR}, 5
    s_add_u32 s{sCol}, s{sCol}, s{sId}
    s_sub_u32 s{sCol}, s{sCol}, 20
    s_mov_b32 s{sBlk}, 5
    L_doT3b:
    {mv(G.sW0, "Wo")}
    s_mov_b32 s{G.sW0+2}, {4096*1280}
    s_mov_b32 s{sSpin}, 0
    ''')
    AT.poll(E, 'L_prd3', D_READY, f's_cmp_eq_u32 s{G.sT0}, 64', 'L_end', sleep=16)
    lines += finalize(E)[0]
    lines += AT.t3(sBlk, sCol, 'L_end', first=cfg.get('t3first', 18))
    E = Stream()
    E('L_wend:')
    prof(E, cfg, 6); dstamp(E, cfg, 13, 250); dstamp(E, cfg, 10, 250, True, 100)
    E(f's_waitcnt vmcnt(0)\n s_endpgm\n L_doT2:\n s_mov_b32 s{sSpin}, 0')
    AT.poll(E, 'L_prd2', D_READY, f's_cmp_eq_u32 s{G.sT0}, 64', 'L_end', sleep=16)
    lines += finalize(E)[0]
    lines += AT.t2(sId, 'L_end')
    E = Stream()
    prof(E, cfg, 6)
    E('s_waitcnt vmcnt(0)\n s_endpgm')
    return lines + finalize(E)[0]

BEST = dict(vdef=4, d_g1=220, pipe3=80, pipe1=60, ackwait=None, d_h1=[40, 80, 120], chk2_at0=22, bar2_at0=31, chk2_at1=12, bar2_at1=20, rdy_ahead=5)
def gen(cfg):
    cfg = dict(cfg); cfg.setdefault('chain', BEST)
    S = Stream(); entry(S, cfg)
    lines = finalize(S)[0] + ['L_end:', 's_endpgm']
    lines += chain_role(0, cfg) + chain_role(1, cfg) + [l.replace('L_end', 'L_wend2') for l in worker(cfg)] + ['L_wend2:', 's_endpgm']
    ref = open('concat_heads__grouped_kv_mqa__memory_aug_recurrent_mem_tr__prompt.s.ref').read().split('\n') if not cfg.get('nohdr') else []
    head = [l for l in ref if l.startswith(';') and '@launch' not in l][:16]
    txt = '\n'.join(head + ['; @launch grid=(256,1,1) block=(256,1,1) lds=163840']) + '\n' + header(NAME)
    txt += '\n'.join(l if l.endswith(':') else '    ' + l for l in lines) + '\n' + descriptor(NAME)
    return txt
if __name__ == '__main__':
    out = sys.argv[1] if len(sys.argv) > 1 else 'main.s'
    open(out, 'w').write(gen(eval(sys.argv[2]) if len(sys.argv) > 2 else {}))
```
